```python
import torch

def _softmax(x, axis=-1):
    return torch.softmax(x, dim=axis)
def _gelu(x):
    return torch.nn.functional.gelu(x, approximate="tanh")
def _silu(x):
    return torch.nn.functional.silu(x)
def _sigmoid(x):
    return torch.sigmoid(x)
def _layernorm(x, axis=-1, eps=1e-5):
    m = x.mean(dim=axis, keepdim=True)
    v = x.var(dim=axis, keepdim=True, unbiased=False)
    return (x - m) / torch.sqrt(v + eps)
def _scatter_add(tgt, idx, src, axis=0):
    return tgt.clone().index_add_(axis, idx, src)
def _segment_sum(src, seg, n):
    out = torch.zeros((n,) + src.shape[1:], dtype=src.dtype)
    return out.index_add_(0, seg, src)
def _pad(x, pw):
    flat = tuple(v for pair in reversed(pw) for v in pair)
    return torch.nn.functional.pad(x, flat)

kernel_name = 'recurrent_scan__ssm_conv_s4d__glu_gated_glu__prompt'

def setup_inputs():

    _w = (lambda a: (lambda t: t.to(torch.bfloat16) if t.is_floating_point() else t)(torch.as_tensor(a)))
    def _A_setup():
        Bsz, L, D, N = 1, 2048, 640, 128
        return {
            "u": _w((lambda *s: torch.randn(*s, dtype=torch.bfloat16) * 0.05)(Bsz, L, D)),
            "log_A_real": _w((lambda *s: torch.randn(*s, dtype=torch.bfloat16) * 6.4)(D, N) * 0.5),
            "A_imag": _w((lambda *s: torch.randn(*s, dtype=torch.bfloat16) * 0.05)(D, N) * 3.14),
            "C_real": _w((lambda *s: torch.randn(*s, dtype=torch.bfloat16) * 0.05)(D, N) / N ** 0.5),
            "C_imag": _w((lambda *s: torch.randn(*s, dtype=torch.bfloat16) * 0.05)(D, N) / N ** 0.5),
            "log_dt": _w((lambda *s: torch.randn(*s, dtype=torch.bfloat16) * 0.05)(D) * 0.5 - 4.0),
            "D_skip": _w((lambda *s: torch.randn(*s, dtype=torch.bfloat16) * 0.05)(D)),
        }
    _A_in = _A_setup()

    def _B_setup():
        B, S, D, F = 1, 2048, 640, 1728
        return {
            "x": _w((lambda *s: torch.randn(*s, dtype=torch.bfloat16) * 0.05)(B, S, D)),
            "w_gate": _w((lambda *s: torch.randn(*s, dtype=torch.bfloat16) * 0.05)(D, F)),
            "w_up": _w((lambda *s: torch.randn(*s, dtype=torch.bfloat16) * 0.05)(D, F)),
            "w_down": _w((lambda *s: torch.randn(*s, dtype=torch.bfloat16) * 0.05)(F, D)),
        }
    _B_in = _B_setup()

    return {
        "A_u": _A_in["u"],
        "A_log_A_real": _A_in["log_A_real"],
        "A_A_imag": _A_in["A_imag"],
        "A_C_real": _A_in["C_real"],
        "A_C_imag": _A_in["C_imag"],
        "A_log_dt": _A_in["log_dt"],
        "A_D_skip": _A_in["D_skip"],
        "B_x": _B_in["x"],
        "B_w_gate": _B_in["w_gate"],
        "B_w_up": _B_in["w_up"],
        "B_w_down": _B_in["w_down"],
    }

def reference(A_u, A_log_A_real, A_A_imag, A_C_real, A_C_imag, A_log_dt, A_D_skip, B_x, B_w_gate, B_w_up, B_w_down):
    def _A_ref(u, log_A_real, A_imag, C_real, C_imag, log_dt, D_skip):
        L = u.shape[1]
        dt = torch.exp(log_dt)
        A = -torch.exp(log_A_real) + 1j * A_imag
        C = (C_real + 1j * C_imag) * dt[:, None]
        pos = (lambda x, dt: x.to(dt))(torch.arange(L), log_dt.dtype)
        P = torch.exp((A * dt[:, None])[:, :, None] * pos[None, None, :])
        K = 2.0 * torch.einsum("dn,dnl->dl", C, P).real
        L2 = 2 * L
        u_t = (lambda x, *d: x.permute(*d))(u, 0, 2, 1)
        Kf = (lambda x, *a, **k: torch.fft.rfft(x.float(), *a, **k))(K, L2)
        Uf = (lambda x, *a, **k: torch.fft.rfft(x.float(), *a, **k))(u_t, L2)
        y = (lambda x, *a, **k: torch.fft.irfft(x, *a, **k).to(torch.bfloat16))(Uf * Kf[None, :, :], L2)[:, :, :L]
        y = (lambda x, *d: x.permute(*d))(y, 0, 2, 1)
        return y + u * D_skip[None, None, :]

    def _B_ref(x, w_gate, w_up, w_down):
        g = torch.einsum("bsd,df->bsf", x, w_gate)
        u = torch.einsum("bsd,df->bsf", x, w_up)
        h = _sigmoid(g) * u
        return torch.einsum("bsf,fd->bsd", h, w_down)

    x = A_u
    xn = _layernorm(x, axis=-1)
    s = _A_ref(xn, A_log_A_real, A_A_imag, A_C_real, A_C_imag, A_log_dt, A_D_skip)
    g = _silu(_B_ref(xn, B_w_gate, B_w_up, B_w_down))
    return x + s * g
```

```python
import re, sys

TRANS = ("v_exp_f32","v_log_f32","v_rcp_f32","v_rsq_f32","v_sqrt_f32","v_sin_f32","v_cos_f32")
def regs(tok):
    tok = tok.strip()
    tok = re.sub(r"^-|^\||\|$", "", tok)
    m = re.fullmatch(r"abs\((.*)\)", tok)
    if m: tok = m.group(1)
    m = re.fullmatch(r"([vas])(\d+)", tok)
    if m: return {(m.group(1), int(m.group(2)))}
    m = re.fullmatch(r"([vas])\[(\d+):(\d+)\]", tok)
    if m: return {(m.group(1), i) for i in range(int(m.group(2)), int(m.group(3))+1)}
    if tok == "vcc": return {("s","vcc")}
    if tok in ("vcc_lo","vcc_hi"): return {("s","vcc")}
    if tok == "exec": return {("s","exec")}
    if tok == "m0": return {("s","m0")}
    return set()

class I:
    def __init__(s, text, ln):
        s.text=text; s.ln=ln
        t = text.split(";")[0].strip()
        p = t.split(None,1)
        s.op = p[0]
        rest = p[1] if len(p)>1 else ""
        ops=[]; depth=0; cur=""
        for ch in rest:
            if ch in "[(": depth+=1
            if ch in "])": depth-=1
            if ch=="," and depth==0: ops.append(cur.strip()); cur=""
            else: cur+=ch
        if cur.strip(): ops.append(cur.strip())
        s.mods = ""
        if ops:
            q = ops[-1].split(None,1)
            ops[-1]=q[0]; s.mods = q[1] if len(q)>1 else ""
        s.ops=ops
        op=s.op
        s.mfma = op.startswith("v_mfma")
        s.valu = op.startswith("v_") and not s.mfma
        s.salu = op.startswith("s_")
        s.ds = op.startswith("ds_")
        s.vmem = op.startswith("buffer_") or op.startswith("global_")
        s.trans = any(op.startswith(x) for x in TRANS)
        s.dpp = "_dpp" in op or "row_" in s.mods or "quad_perm" in s.mods
        s.perml = op.startswith("v_permlane")
        s.lds_dma = s.vmem and re.search(r"\blds\b", s.mods+" "+op.replace("_"," ")) is not None
        R=[regs(o) for o in ops]
        w=set(); r=set()
        if s.mfma:
            w=R[0]; r=R[1]|R[2]|R[3]; s.A=R[1]; s.B=R[2]; s.C=R[3]
            s.passes = 8 if "32x32" in op else 4
        elif s.valu:
            if op.startswith("v_cmp"):
                w=R[0]; r=set().union(*R[1:])
                if op.startswith("v_cmpx"): w|={("s","exec")}
            elif s.perml and "swap" in op:
                w=R[0]|R[1]; r=R[0]|R[1]
            elif op.startswith(("v_add_co","v_sub_co","v_addc_co","v_subb_co")):
                w=R[0]|R[1]; r=set().union(*R[2:])
            elif op=="v_nop": pass
            else:
                w=R[0]; r=set().union(*R[1:]) if len(R)>1 else set()
                if op.startswith(("v_fmac","v_pk_fmac","v_dot2c")) or s.dpp or "sdwa" in op: r|=R[0]
                if op.startswith("v_cndmask") and len(ops)==3: r|={("s","vcc")}
        elif s.ds:
            if op.startswith(("ds_read","ds_bpermute","ds_permute","ds_swizzle")):
                w=R[0]; r=set().union(*R[1:]) if len(R)>1 else set()
            else: r=set().union(*R)
            if "addtid" in op: r|={("s","m0")}
        elif s.vmem:
            if op in ("buffer_inv","buffer_wbl2"): pass
            elif s.lds_dma: r=set().union(*R)|{("s","m0")}
            elif "load" in op: w=R[0]; r=set().union(*R[1:])
            else:
                r=set().union(*R)
                if "atomic" in op and "sc0" in s.mods: w=R[0]
                s.data = R[0] if op.startswith("buffer") else R[1]
        elif s.salu:
            if op.startswith(("s_cmp","s_waitcnt","s_barrier","s_nop","s_branch","s_cbranch","s_endpgm","s_setprio","s_sleep","s_bitcmp")):
                r=set().union(*R) if R else set()
            else:
                w=R[0] if R else set(); r=set().union(*R[1:]) if len(R)>1 else set()
                if "saveexec" in op: w|={("s","exec")}
        s.w=w; s.r=r
        s.ws = 1
        if op=="s_nop": s.ws=int(ops[0],0)+1

def need(p, c):
    n=0
    vw = {x for x in p.w if x[0] in "va"}
    sw = {x for x in p.w if x[0]=="s"}
    if p.valu:
        if c.mfma and vw & c.r: n=max(n,2)
        if (c.dpp or c.perml) and vw & c.r: n=max(n,2)
        if c.op.startswith(("v_readlane","v_readfirstlane")) and vw & c.r: n=max(n,1)
        if p.trans and (c.valu or c.mfma) and not c.trans and vw & c.r: n=max(n,1)
        if p.trans and (c.ds or c.vmem) and vw & c.r: n=max(n,1)
        if sw:
            if c.vmem and sw & c.r: n=max(n,5)
            if c.valu and sw & c.r: n=max(n,2)
            if c.op.startswith(("v_readlane","v_writelane")) and sw & c.r: n=max(n,4)
            if c.salu and sw & c.r: n=max(n,1)
            if ("s","exec") in sw and (c.mfma or c.perml or c.op.startswith(("v_readlane","v_readfirstlane"))): n=max(n,4)
            if ("s","exec") in sw and c.dpp: n=max(n,5)
        if ("op_sel" in p.mods and not p.op.startswith("v_pk")) or "sdwa" in p.op:
            if c.valu and vw & (c.r|c.w): n=max(n,1)
    if p.salu and ("s","m0") in p.w and ("s","m0") in c.r and (c.ds or c.vmem): n=max(n,1)
    if p.mfma:
        P=p.passes
        if c.mfma:
            if p.w & c.C:
                if not (p.w==c.C and c.passes==P): n=max(n,{4:6,8:10}[P])
            if p.w & (c.A|c.B): n=max(n,{4:8,8:12}[P])
            if p.w & c.w and not p.w==c.C: n=max(n,{4:8,8:12}[P])
        elif c.valu or c.vmem or c.ds:
            if p.w & (c.r|c.w): n=max(n,{4:8,8:12}[P])
            if c.valu and p.C & c.w: n=max(n,{4:3,8:7}[P])
    if p.vmem and hasattr(p,"data") and ("x4" in p.op or "x3" in p.op):
        if p.data & c.w: n=max(n,2)
    return n

def check(text):
    ins=[]; labels={}
    intext=True
    for ln,l in enumerate(text.split("\n"),1):
        t=l.split(";")[0].strip()
        if not t: continue
        if t.startswith(".section"): intext=False
        if t==".text": intext=True
        if not intext or t.startswith("."): continue
        m=re.match(r"^([\w.$]+):\s*(.*)$",t)
        if m:
            labels[m.group(1)]=len(ins)
            if not m.group(2): continue
            t=m.group(2)
        ins.append(I(t,ln))
    errs=[]
    W=22
    def scan(seq):
        for j in range(len(seq)):
            c=seq[j]; d=0
            for i in range(j-1,max(-1,j-W),-1):
                p=seq[i]
                n=need(p,c)
                if n>d: errs.append((p.ln,c.ln,n,d,p.text,c.text))
                d+=p.ws
                if d>=20: break
                if p.op in ("s_branch","s_endpgm") and seq is ins: break
    scan(ins)
    for k,x in enumerate(ins):
        if x.op.startswith(("s_branch","s_cbranch")) and x.ops and x.ops[0] in labels:
            tgt=labels[x.ops[0]]
            scan(ins[max(0,k-W):k+1]+ins[tgt:tgt+W])
    out=sorted(set(errs))
    return out

if __name__=="__main__":
    e=check(open(sys.argv[1]).read())
    for x in e: print("HAZARD need %d have %d: L%d [%s] -> L%d [%s]"%(x[2],x[3],x[0],x[4],x[1],x[5]))
    print(len(e),"hazards")
```

```python
import sys, math, struct
from hazcheck import check

NAME = "recurrent_scan__ssm_conv_s4d__glu_gated_glu__prompt"

XNF, XNF_SZ = 0x0, 2621440
HF, HF_SZ = 0x300000, 7077888
WDF, WDF_SZ = 0xA00000, 2211840
SP, SP_SZ = 0xD00000, 2621440

LOG2E = 1.4426950408889634


def fbits(x):
    return "0x%08x" % struct.unpack("<I", struct.pack("<f", x))[0]


class A:
    def __init__(s):
        s.l = []

    def __call__(s, t):
        for x in t.strip("\n").split("\n"):
            x = x.strip()
            if not x:
                continue
            s.l.append(x if x.endswith(":") or x.startswith(".") else "    " + x)

    def text(s):
        return "\n".join(s.l) + "\n"


def vr(b, n=1, f="v"):
    return f"{f}{b}" if n == 1 else f"{f}[{b}:{b+n-1}]"


def ar(b, n=1):
    return vr(b, n, "a")


P_X, P_LA, P_AI, P_CR, P_CI, P_DT, P_DS = 4, 6, 8, 10, 12, 14, 16
P_WG, P_WU, P_WD, P_OUT, P_DBG, P_WS = 20, 22, 24, 26, 28, 30
S_W = 3


def srd(a, d, p, size, off=None, soff=None):
    if off is None and soff is None:
        a(f"s_mov_b32 s{d}, s{p}\ns_mov_b32 s{d+1}, s{p+1}")
    else:
        if off:
            a(f"s_add_u32 s{d}, s{p}, {off}\ns_addc_u32 s{d+1}, s{p+1}, 0")
            if soff is not None:
                a(f"s_add_u32 s{d}, s{d}, s{soff}\ns_addc_u32 s{d+1}, s{d+1}, 0")
        elif soff is not None:
            a(f"s_add_u32 s{d}, s{p}, s{soff}\ns_addc_u32 s{d+1}, s{p+1}, 0")
        else:
            a(f"s_mov_b32 s{d}, s{p}\ns_mov_b32 s{d+1}, s{p+1}")
    a(f"s_mov_b32 s{d+2}, {size}\ns_mov_b32 s{d+3}, 0x20000")


def prologue(a, name):
    a(f""".p2align 8
.globl {name}
.type {name},@function
{name}:
s_cmp_ge_u32 s2, 256
s_cbranch_scc1 {name}_end
s_load_dwordx16 s[4:19], s[0:1], 0
s_load_dwordx8 s[20:27], s[0:1], 64
s_load_dwordx4 s[28:31], s[0:1], 96
v_lshrrev_b32 v2, 6, v0
v_and_b32 v1, 63, v0
v_readfirstlane_b32 s{S_W}, v2
s_waitcnt lgkmcnt(0)
""")


def bf16r(a, d, s):
    a(f"v_cvt_pk_bf16_f32 v{d}, v{s}, v{s}\nv_lshlrev_b32 v{d}, 16, v{d}")


def phase_ln(a, tag):
    srd(a, 32, P_X, 2621440)
    srd(a, 36, P_WS, XNF_SZ, off=XNF)
    a(f"""
v_and_b32 v2, 7, v1
v_lshrrev_b32 v5, 3, v1
v_mul_u32_u24 v6, 1280, v2
v_lshl_add_u32 v3, v5, 4, v6
s_mul_i32 s40, s2, 10240
s_lshl_b32 s41, s{S_W}, 7
s_add_u32 s41, s41, s40
buffer_load_ushort v4, v6, s[32:35], s40 offen
buffer_load_dwordx4 v[8:11], v3, s[32:35], s41 offen
buffer_load_dwordx4 v[12:15], v3, s[32:35], s41 offen offset:512
s_cmp_ge_u32 s{S_W}, 2
s_cbranch_scc1 {tag}_l2
buffer_load_dwordx4 v[16:19], v3, s[32:35], s41 offen offset:1024
{tag}_l2:
v_lshlrev_b32 v5, 9, v5
v_lshl_add_u32 v3, v2, 4, v5
s_lshr_b32 s40, s2, 2
s_mul_i32 s40, s40, 40960
s_and_b32 s41, s2, 3
s_lshl_b32 s41, s41, 7
s_add_u32 s40, s40, s41
s_lshl_b32 s41, s{S_W}, 12
s_add_u32 s40, s40, s41
s_add_u32 s41, s40, 16384
s_add_u32 s42, s40, 32768
v_mov_b32 v44, 0
v_mov_b32 v45, 0
v_mov_b32 v46, 0
v_mov_b32 v47, 0
s_waitcnt vmcnt(0)
v_lshlrev_b32 v4, 16, v4
""")

    def acc(z):
        for i in range(4):
            r = 8 + 4 * z + i
            u = 20 + 8 * z + 2 * i
            a(f"""v_lshlrev_b32 v{u}, 16, v{r}
v_and_b32 v{u+1}, 0xffff0000, v{r}
v_pk_add_f32 v[48:49], v[{u}:{u+1}], v[4:5] op_sel_hi:[1,0] neg_lo:[0,1] neg_hi:[0,1]
v_pk_add_f32 v[44:45], v[44:45], v[48:49]
v_pk_fma_f32 v[46:47], v[48:49], v[48:49], v[46:47]""")

    acc(0)
    acc(1)
    a(f"s_cmp_ge_u32 s{S_W}, 2\ns_cbranch_scc1 {tag}_a2")
    acc(2)
    a(f"""
{tag}_a2:
v_add_f32 v44, v44, v45
v_add_f32 v46, v46, v47
v_lshrrev_b32 v5, 5, v1
v_lshl_add_u32 v5, v2, 1, v5
v_permlane32_swap_b32 v44, v46
v_mul_u32_u24 v5, 272, v5
v_add_f32 v44, v44, v46
v_mov_b32 v45, v44
s_lshl_b32 s43, s{S_W}, 2
v_add_u32 v5, s43, v5
v_permlane16_swap_b32 v44, v45
v_mul_u32_u24 v6, 544, v2
v_add_f32 v44, v44, v45
s_nop 1
v_add_f32_dpp v44, v44, v44 row_ror:8 row_mask:0xf bank_mask:0xf
ds_write_b32 v5, v44 offset:256
s_waitcnt lgkmcnt(0)
s_barrier
ds_read_b128 v[44:47], v6 offset:256
ds_read_b128 v[48:51], v6 offset:528
s_waitcnt lgkmcnt(1)
v_add_f32 v44, v44, v45
v_add_f32 v46, v46, v47
s_waitcnt lgkmcnt(0)
v_add_f32 v48, v48, v49
v_add_f32 v50, v50, v51
v_add_f32 v44, v44, v46
v_add_f32 v48, v48, v50
v_mul_f32 v44, {fbits(1/640)}, v44
v_mul_f32 v48, {fbits(1/640)}, v48
v_fma_f32 v48, -v44, v44, v48
v_add_f32 v44, v44, v4
v_max_f32 v48, 0, v48
""")
    bf16r(a, 44, 44)
    bf16r(a, 48, 48)
    a(f"v_add_f32 v48, {fbits(1e-5)}, v48")
    bf16r(a, 48, 48)
    a("v_sqrt_f32 v48, v48\ns_nop 0")
    bf16r(a, 48, 48)
    a("v_rcp_f32 v46, v48\ns_nop 0")

    def norm(z, soff):
        for i in range(4):
            r = 8 + 4 * z + i
            u = 20 + 8 * z + 2 * i
            a(f"""v_pk_add_f32 v[{u}:{u+1}], v[{u}:{u+1}], v[44:45] op_sel_hi:[1,0] neg_lo:[0,1] neg_hi:[0,1]
v_cvt_pk_bf16_f32 v{r}, v{u}, v{u+1}
v_lshlrev_b32 v{u}, 16, v{r}
v_and_b32 v{u+1}, 0xffff0000, v{r}
v_pk_mul_f32 v[{u}:{u+1}], v[{u}:{u+1}], v[46:47] op_sel_hi:[1,0]
v_cvt_pk_bf16_f32 v{r}, v{u}, v{u+1}""")
        a(f"buffer_store_dwordx4 v[{8+4*z}:{11+4*z}], v3, s[36:39], s{soff} offen")

    norm(0, 40)
    norm(1, 41)
    a(f"s_cmp_ge_u32 s{S_W}, 2\ns_cbranch_scc1 {tag}_n2")
    norm(2, 42)
    a(f"{tag}_n2:")


def phase_relayout(a, tag, s_unit, s_lds):
    srd(a, 32, P_WD, 2211840)
    srd(a, 36, P_WS, WDF_SZ, off=WDF)
    a(f"""
s_mul_i32 s40, s{s_unit}, 52429
s_lshr_b32 s40, s40, 18
s_mul_i32 s41, s40, 5
s_sub_u32 s41, s{s_unit}, s41
s_mul_i32 s42, s40, 40960
s_lshl_b32 s43, s41, 8
s_add_u32 s42, s42, s43
v_lshrrev_b32 v2, 4, v1
v_bfe_u32 v3, v1, 1, 3
v_and_b32 v4, 1, v1
v_xor_b32 v5, v3, v2
v_lshlrev_b32 v5, 5, v5
v_lshl_add_u32 v5, v4, 4, v5
v_mul_u32_u24 v6, 1280, v2
v_add_u32 v6, v6, v5
v_xor_b32 v7, 128, v5
v_mul_u32_u24 v8, 1280, v2
v_add_u32 v7, v7, v8
""")
    for z in range(8):
        a(f"""s_add_u32 m0, s{s_lds}, {z*1024}
s_add_u32 s43, s42, {z*5120}
buffer_load_dwordx4 v{7 if z & 1 else 6}, s[32:35], s43 offen lds""")
    a(f"""
v_lshrrev_b32 v2, 5, v1
v_bfe_u32 v3, v1, 2, 3
v_lshl_add_u32 v4, v2, 4, v3
v_lshlrev_b32 v4, 8, v4
v_and_b32 v5, 3, v1
v_lshl_add_u32 v4, v5, 3, v4
v_add_u32 v4, s{s_lds}, v4
v_lshlrev_b32 v3, 5, v3
v_lshlrev_b32 v9, 4, v1
s_lshl_b32 s43, s41, 3
s_waitcnt vmcnt(0)
""")
    for i in range(8):
        a(f"""v_xor_b32 v5, {i*32}, v3
v_add_u32 v5, v5, v4
ds_read_b64_tr_b16 v[{12+4*i}:{13+4*i}], v5
ds_read_b64_tr_b16 v[{14+4*i}:{15+4*i}], v5 offset:2048""")
    for i in range(8):
        a(f"""s_add_u32 s44, s43, {i}
s_mul_i32 s45, s44, 52429
s_lshr_b32 s45, s45, 18
s_mul_i32 s46, s45, 265
s_mul_i32 s47, s40, 5
s_add_u32 s46, s46, s47
s_add_u32 s46, s46, s44
s_lshl_b32 s46, s46, 10
s_waitcnt lgkmcnt({14-2*i})
buffer_store_dwordx4 v[{12+4*i}:{15+4*i}], v9, s[36:39], s46 offen""")


STG = 17408
M1 = [0, 0, 2, 4, 4, 4, 6, 8, 8]
A_KACC = 96


def row_of(rho, h):
    return 8 * (rho >> 2) + 4 * h + (rho & 3)


def kgen_loads(a, s_pair):
    srd(a, 32, P_LA, 163840)
    srd(a, 36, P_AI, 163840)
    srd(a, 40, P_CR, 163840)
    srd(a, 44, P_CI, 163840)
    a(f"""
s_lshl_b32 s48, s{s_pair}, 9
s_lshl_b32 s49, s{s_pair}, 2
v_lshlrev_b32 v2, 1, v0
buffer_load_ushort v8, v2, s[32:35], s48 offen
buffer_load_ushort v9, v2, s[36:39], s48 offen
buffer_load_ushort v10, v2, s[40:43], s48 offen
buffer_load_ushort v11, v2, s[44:47], s48 offen
s_load_dword s50, s[{P_DT}:{P_DT+1}], s49
s_load_dword s51, s[{P_DS}:{P_DS+1}], s49
""")


def cmul(a, d, x, y, t):
    a(f"""v_pk_mul_f32 v[{t}:{t+1}], v[{x}:{x+1}], v[{y}:{y+1}] op_sel_hi:[0,1]
v_pk_fma_f32 v[{d}:{d+1}], v[{x}:{x+1}], v[{y}:{y+1}], v[{t}:{t+1}] op_sel:[1,1,0] op_sel_hi:[1,0,1] neg_lo:[1,0,0]""")


def kgen_compute(a, tag, vm):
    E1, E8, E64, E256 = 12, 14, 16, 18
    T0, T1 = 20, 22
    Z = 24
    CV = 42
    a(f"""
s_waitcnt lgkmcnt(0)
s_cmp_ge_u32 s{S_W}, 2
s_cselect_b32 s48, 0, 16
s_lshl_b32 s50, s50, s48
s_and_b32 s50, s50, 0xffff0000
s_mul_i32 s48, s{S_W}, {STG}
s_mov_b32 m0, s48
v_mov_b32 v2, {fbits(LOG2E)}
v_mul_f32 v3, s50, v2
v_exp_f32 v3, v3
s_waitcnt vmcnt({vm})
v_lshlrev_b32 v8, 16, v8
v_mul_f32 v8, v8, v2
v_exp_f32 v8, v8
""")
    bf16r(a, 3, 3)
    bf16r(a, 8, 8)
    a(f"""
v_lshlrev_b32 v9, 16, v9
v_lshlrev_b32 v10, 16, v10
v_lshlrev_b32 v11, 16, v11
v_mul_f32 v8, v8, v3
v_mul_f32 v9, v9, v3
v_add_f32 v3, v3, v3
v_mul_f32 v8, {fbits(-LOG2E)}, v8
v_mul_f32 v9, 0.15915494, v9
v_mul_f32 v{Z}, v10, v3
v_mul_f32 v{Z+1}, v11, v3
""")
    for p, E in ((1, E1), (8, E8), (64, E64), (256, E256)):
        if p == 1:
            a(f"v_exp_f32 v{T0}, v8\nv_fract_f32 v{T0+1}, v9")
        else:
            a(f"""v_mul_f32 v{T0}, {fbits(float(p))}, v8
v_mul_f32 v{T0+1}, {fbits(float(p))}, v9
v_exp_f32 v{T0}, v{T0}
v_fract_f32 v{T0+1}, v{T0+1}""")
        a(f"""v_cos_f32 v{E}, v{T0+1}
v_sin_f32 v{E+1}, v{T0+1}
s_nop 0
v_pk_mul_f32 v[{E}:{E+1}], v[{E}:{E+1}], v[{T0}:{T0+1}] op_sel_hi:[1,0]""")
    cvn = [0]

    def putA(z, rows):
        c = CV + (cvn[0] & 3)
        cvn[0] += 1
        a(f"v_cvt_pk_bf16_f32 v{c}, v{z}, -v{z+1}")
        for r in rows:
            a(f"ds_write_addtid_b32 v{c} offset:{r*272}")

    def putB(z, b):
        c = CV + (cvn[0] & 3)
        cvn[0] += 1
        a(f"v_cvt_pk_bf16_f32 v{c}, v{z}, v{z+1}\nds_write_addtid_b32 v{c} offset:{(32+b)*272}")

    putA(Z, [row_of(0, 0)])
    for o in range(1, 9):
        cmul(a, Z + 2 * o, Z + 2 * (o - 1), E1, T0 if o & 1 else T1)
        putA(Z + 2 * o, [row_of(o, 0)])
    for k, o in enumerate((0, 2, 4, 6, 8)):
        cmul(a, Z + 2 * o, Z + 2 * o, E256, T0 if k & 1 else T1)
        putA(Z + 2 * o, [row_of(rho, 1) for rho in range(9) if M1[rho] == o])
    for h in (0, 1):
        for k, o in enumerate((0, 4, 8)):
            cmul(a, Z + 2 * o, Z + 2 * o, E256, T0 if k & 1 else T1)
            putA(Z + 2 * o, [row_of(9 + k, h)])
    for g in (0, 1):
        for h in (0, 1):
            for k, o in enumerate((0, 8)):
                cmul(a, Z + 2 * o, Z + 2 * o, E256, T0 if k & 1 else T1)
                putA(Z + 2 * o, [row_of(12 + 2 * g + k, h)])
    a(f"v_mov_b32 v{Z}, 1.0\nv_mov_b32 v{Z+1}, 0\nv_mov_b32 v{Z+2}, v{E8}\nv_mov_b32 v{Z+3}, v{E8+1}")
    putB(Z, 0)
    putB(Z + 2, 1)
    for b in range(2, 8):
        cmul(a, Z + 2 * b, Z + 2 * (b - 1), E8, T0 if b & 1 else T1)
        putB(Z + 2 * b, b)
    for b in range(8, 32):
        cmul(a, Z + 2 * (b & 7), Z + 2 * (b & 7), E64, T0 if b & 1 else T1)
        putB(Z + 2 * (b & 7), b)
    a(f"""
v_and_b32 v2, 31, v1
v_mul_u32_u24 v2, 272, v2
v_lshrrev_b32 v3, 5, v1
v_lshl_add_u32 v2, v3, 4, v2
s_lshr_b32 s48, s{S_W}, 1
s_mul_i32 s48, s48, {2*STG}
v_add_u32 v2, s48, v2
s_waitcnt lgkmcnt(0)
s_barrier
""")
    steps = [(hh, ks) for hh in (0, 1) for ks in range(8)]
    D = 6

    def rd(i):
        hh, ks = steps[i]
        b = 48 + 8 * (i % D)
        a(f"ds_read_b128 v[{b}:{b+3}], v2 offset:{hh*STG+ks*32}\nds_read_b128 v[{b+4}:{b+7}], v2 offset:{hh*STG+ks*32+32*272}")

    for i in range(D):
        rd(i)
    for i in range(16):
        b = 48 + 8 * (i % D)
        out = min(D - 1, 15 - i)
        a(f"s_waitcnt lgkmcnt({2*out})")
        c = "0" if i == 0 else ar(A_KACC, 16)
        a(f"v_mfma_f32_32x32x16_bf16 {ar(A_KACC,16)}, v[{b}:{b+3}], v[{b+4}:{b+7}], {c}")
        if i + D < 16:
            rd(i + D)
    a("s_barrier")


def wblk(kb8):
    return ((kb8 + 34) % 80) * 2048


def gemm1_setup(a, s_ft):
    srd(a, 52, P_WG, 2211840)
    srd(a, 56, P_WU, 2211840)
    a(f"""
v_lshrrev_b32 v2, 3, v1
v_bfe_u32 v3, v1, 1, 2
v_bfe_u32 v4, v1, 4, 1
v_xor_b32 v3, v3, v4
v_and_b32 v4, 1, v1
v_lshlrev_b32 v4, 4, v4
v_lshl_add_u32 v3, v3, 5, v4
v_mul_u32_u24 v2, 3456, v2
v_add_u32 v100, v2, v3
v_xor_b32 v3, 64, v3
v_add_u32 v101, v2, v3
s_lshl_b32 s60, s{s_ft}, 7
s_lshr_b32 s61, s{S_W}, 1
s_mul_i32 s62, s61, 27648
s_add_u32 s60, s60, s62
s_lshl_b32 s61, s{S_W}, 10
""")


def gemm1_dma(a, tag, ks_lo, ks_hi):
    a(f"s_bitcmp1_b32 s{S_W}, 0\ns_cbranch_scc1 {tag}_u")
    for mat in (0, 1):
        if mat:
            a(f"{tag}_u:")
        for ks in range(ks_lo, ks_hi):
            a(f"""s_add_u32 m0, s61, {wblk(2*ks)}
s_add_u32 s62, s60, {ks*55296}
buffer_load_dwordx4 v{100+mat}, s[{52+4*mat}:{55+4*mat}], s62 offen lds""")
        if not mat:
            a(f"s_branch {tag}_e")
    a(f"{tag}_e:")


XD = 8
ACC = 128


def gemm1_main(a, s_m, s_ft):
    a(f"""
s_lshl_b32 s40, s{s_m}, 2
s_add_u32 s40, s40, s{S_W}
s_mul_i32 s41, s40, 81920
""")
    srd(a, 32, P_WS, 81920, off=XNF, soff=41)
    a(f"""
v_lshlrev_b32 v102, 4, v1
v_add_u32 v103, 40960, v102
""")

    def xload(ks):
        b = 8 * (ks % XD)
        so = f"s{44 + (ks >> 2) % 2}"
        if ks % 4 == 0:
            a(f"s_mov_b32 {so}, {ks*1024}")
        a(f"buffer_load_dwordx4 {ar(b,4)}, v102, s[32:35], {so} offen offset:{(ks%4)*1024}")
        a(f"buffer_load_dwordx4 {ar(b+4,4)}, v103, s[32:35], {so} offen offset:{(ks%4)*1024}")

    for ks in range(XD):
        xload(ks)
    a(f"""
v_lshrrev_b32 v2, 4, v1
v_lshlrev_b32 v2, 10, v2
v_bfe_u32 v3, v1, 2, 2
v_lshl_add_u32 v2, v3, 7, v2
v_and_b32 v3, 3, v1
v_lshl_add_u32 v2, v3, 3, v2
v_bfe_u32 v3, v1, 3, 2
v_lshlrev_b32 v3, 5, v3
""")
    cur = [None]

    def setbase(win):
        if cur[0] is None:
            for ft in range(4):
                a(f"v_xor_b32 v4, {ft*32}, v3\nv_add3_u32 v{104+ft}, v2, v4, s46")
        cur[0] = win

    def win_of(ks):
        return wblk(2 * ks) >> 16

    a(f"s_mov_b32 s46, {win_of(0) << 16}")
    setbase(win_of(0))
    a(f"""
s_mul_i32 s41, s40, 221184
s_lshl_b32 s42, s{s_ft}, 13
s_add_u32 s41, s41, s42
""")
    srd(a, 36, P_WS, 8192, off=HF, soff=41)
    a(f"""
v_bfe_u32 v2, v1, 4, 1
v_lshlrev_b32 v2, 10, v2
v_and_b32 v3, 15, v1
v_lshl_add_u32 v2, v3, 4, v2
v_lshrrev_b32 v3, 5, v1
v_lshl_add_u32 v108, v3, 8, v2
v_add_u32 v109, 4096, v108
s_waitcnt vmcnt({2*XD-2})
s_barrier
""")
    basewin = [win_of(0)] * 4

    def wread(ks, ft):
        w = win_of(ks)
        if w != basewin[ft]:
            d = (w - basewin[ft]) << 16
            a(f"v_add_u32 v{104+ft}, {d & 0xffffffff:#x}, v{104+ft}")
            basewin[ft] = w
        o = wblk(2 * ks) & 0xFFFF
        b = 64 + 16 * (ks & 1) + 4 * ft
        a(f"ds_read_b64_tr_b16 {ar(b,2)}, v{104+ft} offset:{o}\nds_read_b64_tr_b16 {ar(b+2,2)}, v{104+ft} offset:{o+512}")

    for ft in range(4):
        wread(0, ft)
    for ks in range(40):
        xs = 8 * (ks % XD)
        if ks > 0:
            a(f"s_waitcnt vmcnt({2*min(XD-1, 39-ks)})")
        for ft in range(4):
            wb = 64 + 16 * (ks & 1) + 4 * ft
            a(f"s_waitcnt lgkmcnt({6 if ks < 39 else 6-2*ft})")
            for tt in range(2):
                d = ACC + 32 * ft + 16 * tt
                c = "0" if ks == 0 else vr(d, 16)
                a(f"v_mfma_f32_32x32x16_bf16 {vr(d,16)}, {ar(wb,4)}, {ar(xs+4*tt,4)}, {c}")
                if tt == 0 and ks < 39:
                    wread(ks + 1, ft)
        if ks + XD < 40:
            xload(ks + XD)


def gemm1_epilogue(a):
    a(f"s_mov_b32 s44, {fbits(-LOG2E)}\ns_mov_b32 s45, s44\ns_nop 4")
    n = 0
    for ft in range(4):
        for tt in range(2):
            d = ACC + 32 * ft + 16 * tt
            if ft == 3:
                a("s_nop 7")
            for i in range(0, 8, 2):
                a(f"v_pk_mul_f32 v[{d+i}:{d+i+1}], v[{d+i}:{d+i+1}], s[44:45]")
            for i in range(8):
                a(f"v_exp_f32 v{d+i}, v{d+i}")
            for i in range(0, 8, 2):
                a(f"v_pk_add_f32 v[{d+i}:{d+i+1}], v[{d+i}:{d+i+1}], 1.0 op_sel_hi:[1,0]")
            for i in range(8):
                a(f"v_rcp_f32 v{d+i}, v{d+i}")
            for i in range(0, 8, 2):
                a(f"v_pk_mul_f32 v[{d+i}:{d+i+1}], v[{d+i}:{d+i+1}], v[{d+8+i}:{d+9+i}]")
            for i in range(4):
                a(f"v_cvt_pk_bf16_f32 v{d+8+i}, v{d+2*i}, v{d+2*i+1}")
            a(f"buffer_store_dwordx4 v[{d+8}:{d+11}], v{108+(ft>>1)}, s[36:39], 0 offen offset:{tt*2048+(ft&1)*512}")
            n += 1


CB = 13312
R1O, UO = 4160, 8320
SCR = 2 * CB


def conv_uload(a, s_pair):
    srd(a, 40, P_WS, XNF_SZ, off=XNF)
    a(f"""
s_lshr_b32 s46, s{s_pair}, 2
s_lshl_b32 s46, s46, 9
s_and_b32 s47, s{s_pair}, 3
s_lshl_b32 s47, s47, 2
s_add_u32 s46, s46, s47
s_mul_i32 s47, s{S_W}, 655360
s_add_u32 s46, s46, s47
v_lshrrev_b32 v2, 5, v1
v_mul_u32_u24 v2, 40960, v2
v_and_b32 v3, 31, v1
v_lshl_add_u32 v110, v3, 4, v2
""")
    for z in range(8):
        a(f"buffer_load_dword v{112+z}, v110, s[40:43], s46 offen")
        if z < 7:
            a("s_add_u32 s46, s46, 81920")


def conv_main(a, tag, s_pair, vm):
    P = 8
    for i in range(16):
        a(f"v_accvgpr_read_b32 v{P+i}, a{A_KACC+i}")
    a(f"""
s_lshr_b32 s44, s{S_W}, 1
s_mul_i32 s44, s44, {CB}
s_and_b32 s45, s{S_W}, 1
s_mul_i32 s46, s45, {R1O}
s_add_u32 s46, s46, s44
v_lshlrev_b32 v2, 4, v1
v_sub_u32 v2, {4080-3072}, v2
v_add_u32 v2, s46, v2
v_and_b32 v3, 1, v1
v_cmp_eq_u32 vcc, 0, v3
v_mov_b32 v40, 0
v_mov_b32 v41, 0
v_mov_b32 v42, 0
v_mov_b32 v43, 0
v_cndmask_b32 v24, v{P+13}, v{P+12}, vcc
v_cndmask_b32 v25, v{P+15}, v{P+14}, vcc
v_lshlrev_b32 v3, 4, v1
v_add_u32 v4, s44, v3
v_add_u32 v3, s46, v3
s_mov_b64 exec, 0x3fffffff
ds_write_b128 v4, v[40:43] offset:{UO}
s_mov_b64 exec, -1
s_cmp_eq_u32 s45, 1
s_cbranch_scc1 {tag}_c1
""")
    S0 = [P + o for o in range(9)]
    S2 = [P + 9] * 3 + [P + 10] * 3 + [P + 11] * 3
    S3a = [P + 12] * 4 + [24] + [P + 13] * 4
    S3b = [P + 14] * 4 + [25] + [P + 15] * 4
    for cp in (0, 1):
        if cp:
            a(f"{tag}_c1:")
        for k, (S, off) in enumerate(((S0, 3072), (S2, 2048), (S3a, 1024), (S3b, 0))):
            b = 28 + 4 * (k & 1)
            for i in range(4):
                a(f"v_cvt_pk_bf16_f32 v{b+i}, v{S[7+cp-2*i]}, v{S[6+cp-2*i]}")
            a(f"ds_write_b128 v2, v[{b}:{b+3}] offset:{off}")
        if cp:
            a(f"s_mov_b64 exec, 1\nv_cvt_pk_bf16_f32 v40, v{P}, v41")
        else:
            a(f"s_branch {tag}_c2")
    a(f"""
{tag}_c2:
s_mov_b64 exec, 3
ds_write_b128 v3, v[40:43] offset:4096
s_mov_b64 exec, -1
s_lshl_b32 s46, s{S_W}, 10
v_lshl_add_u32 v2, v1, 1, s46
s_waitcnt vmcnt({vm})
""")
    for z in range(8):
        a(f"ds_write_b16 v2, v{112+z} offset:{UO+480+128*z}\nds_write_b16_d16_hi v2, v{112+z} offset:{CB+UO+480+128*z}")
    a(f"""
v_and_b32 v2, 15, v1
v_lshrrev_b32 v3, 4, v1
v_and_b32 v4, 1, v1
v_cmp_eq_u32 vcc, 0, v4
v_mov_b32 v5, {2*(2031-96-256*7)}
v_mov_b32 v6, {R1O+2*(2032-96-256*7)}
v_lshlrev_b32 v4, 4, v3
v_cndmask_b32 v5, v5, v6, vcc
v_add_u32 v5, v5, v4
v_lshlrev_b32 v6, 1, v2
v_sub_u32 v5, v5, v6
s_lshl_b32 s46, s45, 8
s_sub_u32 s46, s44, s46
v_add_u32 v47, s46, v5
v_add_u32 v46, 1024, v47
v_add_u32 v45, 2048, v47
v_add_u32 v44, 3072, v47
v_lshl_add_u32 v4, v2, 5, v4
s_add_u32 s46, s46, {UO+256}
v_add_u32 v48, s46, v4
""")
    a(f"""
v_mul_u32_u24 v3, 320, v3
v_lshl_add_u32 v3, v2, 4, v3
s_mul_i32 s46, s{S_W}, 10240
s_add_u32 s46, s46, {SCR}
v_add_u32 v49, s46, v3
v_and_b32 v3, 3, v1
v_mul_u32_u24 v3, 320, v3
v_lshrrev_b32 v2, 2, v1
v_lshl_add_u32 v3, v2, 4, v3
s_mul_i32 s46, s{S_W}, 2560
s_add_u32 s46, s46, {SCR}
v_add_u32 v50, s46, v3
s_lshl_b32 s46, s{S_W}, 10
v_lshl_add_u32 v51, v1, 3, s46
s_waitcnt lgkmcnt(0)
s_barrier
""")
    FA, FB = 128, 160
    Y = 64

    def reads(c):
        s = 64 * (c & 1)
        out = []
        for k in range(8):
            o = 16 * (3 - c) + (128 if k % 2 == 0 else 0)
            b = FA + s + 4 * k
            out.append(f"ds_read2_b32 {ar(b,2)}, v{44+(k>>1)} offset0:{o} offset1:{o+1}")
            out.append(f"ds_read2_b32 {ar(b+2,2)}, v{44+(k>>1)} offset0:{o+2} offset1:{o+3}")
            out.append(f"ds_read_b128 {ar(FB+s+4*k,4)}, v48 offset:{512*k+64*(3-c)}")
        return out

    for x in reads(0):
        a(x)
    for c in range(4):
        s = 64 * (c & 1)
        nxt = reads(c + 1) if c < 3 else []
        a("s_waitcnt lgkmcnt(0)")
        for aa in range(8):
            for m in range(8 - aa):
                j = aa + m
                cc = "0" if (c == 0 and aa == 0) else vr(Y + 4 * j, 4)
                a(f"v_mfma_f32_16x16x32_bf16 {vr(Y+4*j,4)}, {ar(FA+s+4*aa,4)}, {ar(FB+s+4*m,4)}, {cc}")
                if nxt:
                    a(nxt.pop(0))
    a(f"""
s_lshl_b32 s46, s{s_pair}, 13
""")
    srd(a, 40, P_WS, 8192, off=SP, soff=46)
    a("s_lshl_b32 s46, s51, 16\ns_and_b32 s47, s51, 0xffff0000")
    for j in range(8):
        if j == 7:
            a("s_nop 1")
        a(f"ds_write_b128 v49, {vr(Y+4*j,4)} offset:{1280*j}")
    a(f"""
v_lshlrev_b32 v52, 4, v1
s_lshl_b32 s48, s{S_W}, 11
s_waitcnt lgkmcnt(0)
s_barrier
""")
    for jj in range(2):
        for w in range(4):
            a(f"ds_read_b128 {vr(Y+16*jj+4*w,4)}, v50 offset:{10240*w+1280*jj}")
        for ch in range(2):
            a(f"ds_read_b64 {vr(8+4*jj+2*ch,2)}, v51 offset:{CB*ch+UO+480+512*jj}")
    for jj in range(2):
        a(f"s_waitcnt lgkmcnt({6-6*jj})")
        for ch in range(2):
            y = Y + 16 * jj + 8 * ch
            u = 8 + 4 * jj + 2 * ch
            a(f"""v_pk_add_f32 v[{y}:{y+1}], v[{y}:{y+1}], v[{y+4}:{y+5}]
v_pk_add_f32 v[{y+2}:{y+3}], v[{y+2}:{y+3}], v[{y+6}:{y+7}]
v_lshlrev_b32 v{y+4}, 16, v{u}
v_and_b32 v{y+5}, 0xffff0000, v{u}
v_lshlrev_b32 v{y+6}, 16, v{u+1}
v_and_b32 v{y+7}, 0xffff0000, v{u+1}""")
            for e in range(4):
                a(f"v_fmac_f32 v{y+e}, s{46+ch}, v{y+4+e}")
        y = Y + 16 * jj
        for e in range(4):
            a(f"v_cvt_pk_bf16_f32 v{y+4+e}, v{y+e}, v{y+8+e}")
        a(f"buffer_store_dwordx4 v[{y+4}:{y+7}], v52, s[40:43], s48 offen offset:{1024*jj}")


G2D = 4
RS = 336
PART = 64 * RS
SLDS = 4 * PART


def phase_gemm2(a, tag):
    a(f"""
s_and_b32 s40, s2, 7
s_lshr_b32 s41, s2, 6
s_lshl_b32 s40, s40, 2
s_add_u32 s40, s40, s41
s_bfe_u32 s41, s2, 0x30003
s_mul_i32 s42, s40, 221184
s_mul_i32 s43, s41, 276480
""")
    srd(a, 32, P_WS, 221184, off=HF, soff=42)
    srd(a, 36, P_WS, 276480, off=WDF, soff=43)
    a(f"""
v_lshlrev_b32 v2, 4, v1
v_add_u32 v3, 4096, v2
s_lshl_b32 s44, s{S_W}, 12
s_mul_i32 s45, s{S_W}, 5120
""")

    def load(i):
        b = 36 * (i % G2D)
        for mt in range(4):
            a(f"buffer_load_dwordx4 {ar(b+4*mt,4)}, v2, s[32:35], s44 offen offset:{1024*mt}")
        for nt in range(4):
            a(f"buffer_load_dwordx4 {ar(b+16+4*nt,4)}, v2, s[36:39], s45 offen offset:{1024*nt}")
        a(f"buffer_load_dwordx4 {ar(b+32,4)}, v3, s[36:39], s45 offen")
        a("s_add_u32 s44, s44, 16384\ns_add_u32 s45, s45, 20480")

    for i in range(G2D):
        load(i)
    a(f"""
s_mul_i32 s46, s41, 327680
s_lshl_b32 s47, s40, 8
s_add_u32 s46, s46, s47
""")
    srd(a, 48, P_WS, 39 * 8192 + 256, off=SP, soff=46)
    a(f"""
s_mul_i32 s46, s40, 81920
s_mul_i32 s47, s41, 160
s_add_u32 s46, s46, s47
s_mul_i32 s47, s{S_W}, 20480
s_add_u32 s46, s46, s47
""")
    srd(a, 52, P_X, 15 * 1280 + 160, soff=46)
    srd(a, 56, P_OUT, 15 * 1280 + 160, soff=46)
    a(f"""
v_lshrrev_b32 v4, 4, v0
v_and_b32 v5, 15, v0
v_lshlrev_b32 v5, 4, v5
v_lshl_add_u32 v6, v4, 13, v5
v_mul_u32_u24 v4, 272, v4
v_add_u32 v7, v4, v5
v_add_u32 v7, {SLDS}, v7
s_mov_b32 s46, 131072
s_mov_b32 s47, 262144
""")
    for z in range(5):
        a(f"""v_add_u32 v4, {64*z}, v1
v_mul_u32_u24 v5, 3277, v4
v_lshrrev_b32 v5, 16, v5
v_mul_u32_u24 v45, 20, v5
v_sub_u32 v4, v4, v45
v_mul_u32_u24 v45, 1280, v5
v_lshl_add_u32 v{30+z}, v4, 3, v45
v_lshl_add_u32 v5, s{S_W}, 4, v5
v_mul_u32_u24 v45, {RS}, v5
v_lshl_add_u32 v{35+z}, v4, 4, v45
v_mul_u32_u24 v45, 544, v4
v_lshl_add_u32 v45, v5, 2, v45
v_add_u32 v{40+z}, {SLDS}, v45""")
    a(f"""
v_and_b32 v4, 15, v1
v_mul_u32_u24 v4, {RS}, v4
v_lshrrev_b32 v5, 4, v1
v_lshl_add_u32 v4, v5, 4, v4
s_mul_i32 s60, s{S_W}, {PART}
v_add_u32 v46, s60, v4
""")
    Y = 48
    NS = 14
    extra_at = NS - G2D
    for i in range(NS):
        b = 36 * (i % G2D)
        out = 9 * min(G2D - 1, NS - 1 - i) + (8 if i > extra_at else 0)
        a(f"s_waitcnt vmcnt({out})")
        for mt in range(4):
            for nt in range(5):
                d = Y + 20 * mt + 4 * nt
                cc = "0" if i == 0 else vr(d, 4)
                a(f"v_mfma_f32_16x16x32_bf16 {vr(d,4)}, {ar(b+16+4*nt,4)}, {ar(b+4*mt,4)}, {cc}")
        if i + G2D < NS:
            load(i + G2D)
        if i == extra_at:
            a("""buffer_load_dwordx4 v[8:11], v6, s[48:51], 0 offen
buffer_load_dwordx4 v[12:15], v6, s[48:51], s46 offen
buffer_load_dwordx4 v[16:19], v6, s[48:51], s47 offen""")
            for z in range(5):
                a(f"buffer_load_dwordx2 v[{20+2*z}:{21+2*z}], v{30+z}, s[52:55], 0 offen")
    a("s_nop 3")
    for mt in range(4):
        for nt in range(5):
            d = Y + 20 * mt + 4 * nt
            a(f"ds_write_b128 v46, {vr(d,4)} offset:{mt*16*RS+nt*64}")
    a(f"""
s_waitcnt vmcnt(5)
ds_write_b128 v7, v[8:11]
ds_write_b128 v7, v[12:15] offset:{16*272}
s_cmp_ge_u32 s{S_W}, 2
s_cbranch_scc1 {tag}_s2
ds_write_b128 v7, v[16:19] offset:{32*272}
{tag}_s2:
s_mov_b32 s44, {fbits(-LOG2E)}
s_mov_b32 s45, s44
s_waitcnt lgkmcnt(0)
s_barrier
""")

    def rd(z):
        for w in range(4):
            a(f"ds_read_b128 {vr(Y+16*z+4*w,4)}, v{35+z} offset:{w*PART}")
        a(f"ds_read2_b32 v[{8+2*z}:{9+2*z}], v{40+z} offset0:0 offset1:68")

    rd(0)
    rd(1)
    rd(2)
    a("s_waitcnt vmcnt(0)")
    for z in range(5):
        y = Y + 16 * z
        a(f"s_waitcnt lgkmcnt({5*min(2,4-z)})")
        a(f"""v_pk_add_f32 v[{y}:{y+1}], v[{y}:{y+1}], v[{y+4}:{y+5}]
v_pk_add_f32 v[{y+2}:{y+3}], v[{y+2}:{y+3}], v[{y+6}:{y+7}]
v_pk_add_f32 v[{y+8}:{y+9}], v[{y+8}:{y+9}], v[{y+12}:{y+13}]
v_pk_add_f32 v[{y+10}:{y+11}], v[{y+10}:{y+11}], v[{y+14}:{y+15}]
v_pk_add_f32 v[{y}:{y+1}], v[{y}:{y+1}], v[{y+8}:{y+9}]
v_pk_add_f32 v[{y+2}:{y+3}], v[{y+2}:{y+3}], v[{y+10}:{y+11}]""")
        if z + 3 < 5:
            rd(z + 3)
        a(f"""v_pk_mul_f32 v[{y+4}:{y+5}], v[{y}:{y+1}], s[44:45]
v_pk_mul_f32 v[{y+6}:{y+7}], v[{y+2}:{y+3}], s[44:45]""")
        for e in range(4):
            a(f"v_exp_f32 v{y+4+e}, v{y+4+e}")
        s0, x0 = 8 + 2 * z, 20 + 2 * z
        a(f"""v_lshlrev_b32 v{y+8}, 16, v{s0}
v_and_b32 v{y+9}, 0xffff0000, v{s0}
v_pk_add_f32 v[{y+4}:{y+5}], v[{y+4}:{y+5}], 1.0 op_sel_hi:[1,0]
v_pk_add_f32 v[{y+6}:{y+7}], v[{y+6}:{y+7}], 1.0 op_sel_hi:[1,0]""")
        for e in range(4):
            a(f"v_rcp_f32 v{y+4+e}, v{y+4+e}")
        a(f"""v_lshlrev_b32 v{y+10}, 16, v{s0+1}
v_and_b32 v{y+11}, 0xffff0000, v{s0+1}
v_lshlrev_b32 v{y+12}, 16, v{x0}
v_and_b32 v{y+13}, 0xffff0000, v{x0}
v_lshlrev_b32 v{y+14}, 16, v{x0+1}
v_and_b32 v{y+15}, 0xffff0000, v{x0+1}
v_pk_mul_f32 v[{y}:{y+1}], v[{y}:{y+1}], v[{y+4}:{y+5}]
v_pk_mul_f32 v[{y+2}:{y+3}], v[{y+2}:{y+3}], v[{y+6}:{y+7}]
v_pk_fma_f32 v[{y}:{y+1}], v[{y}:{y+1}], v[{y+8}:{y+9}], v[{y+12}:{y+13}]
v_pk_fma_f32 v[{y+2}:{y+3}], v[{y+2}:{y+3}], v[{y+10}:{y+11}], v[{y+14}:{y+15}]
v_cvt_pk_bf16_f32 v{y+4}, v{y}, v{y+1}
v_cvt_pk_bf16_f32 v{y+5}, v{y+2}, v{y+3}
buffer_store_dwordx2 v[{y+4}:{y+5}], v{30+z}, s[56:59], 0 offen""")


def descriptor(name, vg, acc):
    return f""".amdhsa_kernel {name}
  .amdhsa_next_free_vgpr {vg}
  .amdhsa_next_free_sgpr 102
  .amdhsa_accum_offset {acc}
  .amdhsa_group_segment_fixed_size 0
  .amdhsa_kernarg_size 112
  .amdhsa_user_sgpr_count 2
  .amdhsa_user_sgpr_kernarg_segment_ptr 1
  .amdhsa_system_sgpr_workgroup_id_x 1
.end_amdhsa_kernel
"""


def build():
    a = A()
    a('.amdgcn_target "amdgcn-amd-amdhsa--gfx950"\n.text')
    prologue(a, "prep_kernel")
    phase_ln(a, "ln")
    a(f"""
s_mov_b32 s64, s2
s_mov_b32 s65, 8192
s_cmp_eq_u32 s{S_W}, 3
s_cbranch_scc1 prep_rl
s_add_u32 s64, s2, 256
s_mov_b32 s65, 16384
s_cmp_lg_u32 s{S_W}, 2
s_cbranch_scc1 prep_kernel_end
s_cmp_ge_u32 s64, 270
s_cbranch_scc1 prep_kernel_end
prep_rl:
""")
    phase_relayout(a, "rl", 64, 65)
    a("prep_kernel_end:\ns_endpgm")
    prologue(a, "mid_kernel")
    a(f"""
s_and_b32 s64, s2, 7
s_lshr_b32 s65, s2, 3
s_and_b32 s66, s64, 1
s_lshl_b32 s66, s66, 2
s_and_b32 s67, s65, 3
s_add_u32 s66, s66, s67
s_lshr_b32 s67, s64, 1
s_mul_i32 s67, s67, 7
s_lshr_b32 s70, s65, 2
s_add_u32 s67, s67, s70
s_mov_b32 s69, s65
s_mov_b32 s71, 1
s_cmp_ge_u32 s70, 7
s_cselect_b32 s71, 0, s71
s_cmp_ge_u32 s67, 27
s_cselect_b32 s71, 0, s71
mid_loop:
s_lshr_b32 s68, s69, 2
s_lshl_b32 s68, s68, 3
s_add_u32 s68, s68, s64
s_lshl_b32 s68, s68, 2
s_and_b32 s70, s69, 3
s_add_u32 s68, s68, s70
""")
    kgen_loads(a, 68)
    a("s_cmp_eq_u32 s71, 0\ns_cbranch_scc1 mid_spare")
    gemm1_setup(a, 67)
    gemm1_dma(a, "dA", 0, 23)
    a("s_waitcnt vmcnt(23)\ns_branch mid_kg\nmid_spare:\ns_waitcnt vmcnt(0)\nmid_kg:")
    kgen_compute(a, "kg", 63)
    a("s_cmp_eq_u32 s71, 0\ns_cbranch_scc1 mid_spare2")
    gemm1_dma(a, "dB", 23, 40)
    gemm1_main(a, 66, 67)
    conv_uload(a, 68)
    a("s_barrier")
    gemm1_epilogue(a)
    a("s_waitcnt vmcnt(8)\ns_branch mid_cv\nmid_spare2:")
    conv_uload(a, 68)
    a("s_nop 7\ns_waitcnt vmcnt(0)\nmid_cv:")
    conv_main(a, "cv", 68, 63)
    a("""
s_cmp_lt_u32 s65, 28
s_cbranch_scc1 mid_kernel_end
s_add_u32 s69, s69, 4
s_cmp_ge_u32 s69, 40
s_cbranch_scc1 mid_kernel_end
s_barrier
s_branch mid_loop
mid_kernel_end:
s_endpgm
""")
    prologue(a, "fin_kernel")
    phase_gemm2(a, "g2")
    a("fin_kernel_end:\ns_endpgm")
    body = a.text()
    head = f"""; S4D long-convolution + GLU block, generated by gen1.py
; @launch kernel=prep_kernel grid=(256,1,1) block=(256,1,1) lds=24576
; @launch kernel=mid_kernel grid=(256,1,1) block=(256,1,1) lds=163840
; @launch kernel=fin_kernel grid=(256,1,1) block=(256,1,1) lds={SLDS+40*272}
"""
    tail = '.section .rodata,"a"\n.p2align 6\n' + descriptor("prep_kernel", 64, 64) + ".p2align 6\n" + descriptor("mid_kernel", 512, 256) + ".p2align 6\n" + descriptor("fin_kernel", 128 + 144, 128)
    return head + body + tail


if __name__ == "__main__":
    t = build()
    out = sys.argv[1] if len(sys.argv) > 1 else f"cdna_kernels/{NAME}.s"
    open(out, "w").write(t)
    e = check(t)
    for x in e:
        print("HAZARD need %d have %d: L%d [%s] -> L%d [%s]" % (x[2], x[3], x[0], x[4], x[1], x[5]))
    print(len(e), "hazards;", len(t), "bytes")
```

```python
import sys, math, struct
from hazcheck import check

NAME = "recurrent_scan__ssm_conv_s4d__glu_gated_glu__prompt"

XNF, XNF_SZ = 0x0, 2621440
HF, HF_SZ = 0x300000, 7077888
WDF, WDF_SZ = 0xA00000, 2211840
SP, SP_SZ = 0xD00000, 2621440

LOG2E = 1.4426950408889634


def fbits(x):
    return "0x%08x" % struct.unpack("<I", struct.pack("<f", x))[0]


class A:
    def __init__(s):
        s.l = []

    def __call__(s, t):
        for x in t.strip("\n").split("\n"):
            x = x.strip()
            if not x:
                continue
            s.l.append(x if x.endswith(":") or x.startswith(".") else "    " + x)

    def text(s):
        return "\n".join(s.l) + "\n"


def vr(b, n=1, f="v"):
    return f"{f}{b}" if n == 1 else f"{f}[{b}:{b+n-1}]"


def ar(b, n=1):
    return vr(b, n, "a")


P_X, P_LA, P_AI, P_CR, P_CI, P_DT, P_DS = 4, 6, 8, 10, 12, 14, 16
P_WG, P_WU, P_WD, P_OUT, P_DBG, P_WS = 20, 22, 24, 26, 28, 30
S_W = 3


def srd(a, d, p, size, off=None, soff=None):
    if off is None and soff is None:
        a(f"s_mov_b32 s{d}, s{p}\ns_mov_b32 s{d+1}, s{p+1}")
    else:
        if off:
            a(f"s_add_u32 s{d}, s{p}, {off}\ns_addc_u32 s{d+1}, s{p+1}, 0")
            if soff is not None:
                a(f"s_add_u32 s{d}, s{d}, s{soff}\ns_addc_u32 s{d+1}, s{d+1}, 0")
        elif soff is not None:
            a(f"s_add_u32 s{d}, s{p}, s{soff}\ns_addc_u32 s{d+1}, s{p+1}, 0")
        else:
            a(f"s_mov_b32 s{d}, s{p}\ns_mov_b32 s{d+1}, s{p+1}")
    a(f"s_mov_b32 s{d+2}, {size}\ns_mov_b32 s{d+3}, 0x20000")


def prologue(a, name):
    a(f""".p2align 8
.globl {name}
.type {name},@function
{name}:
s_cmp_ge_u32 s2, 256
s_cbranch_scc1 {name}_end
{"s_memrealtime s[76:77]" if STAMPS else ""}
s_load_dwordx16 s[4:19], s[0:1], 0
s_load_dwordx8 s[20:27], s[0:1], 64
s_load_dwordx4 s[28:31], s[0:1], 96
v_lshrrev_b32 v2, 6, v0
v_and_b32 v1, 63, v0
v_readfirstlane_b32 s{S_W}, v2
s_waitcnt lgkmcnt(0)
""")


STAMPS = False
STAMP_OFF = 0x1100000
def stamp(a, k):
    if STAMPS:
        a(f"s_memrealtime s[{76+2*k}:{77+2*k}]\ns_waitcnt lgkmcnt(0)")
def stamp_out(a, kern, n):
    if not STAMPS: return
    a("s_waitcnt vmcnt(0)")
    stamp(a, n)
    srd(a, 72, P_WS, 65536*4, off=STAMP_OFF+kern*65536)
    a(f"s_lshl_b32 s70, s2, 2\ns_add_u32 s70, s70, s{S_W}\ns_lshl_b32 s70, s70, 6\ns_mov_b64 exec, 1")
    for k in range(n+1):
        a(f"v_mov_b32 v2, s{76+2*k}\nv_mov_b32 v3, {4*k}\nbuffer_store_dword v2, v3, s[72:75], s70 offen\ns_nop 1")

def bf16r(a, d, s):
    a(f"v_cvt_pk_bf16_f32 v{d}, v{s}, v{s}\nv_lshlrev_b32 v{d}, 16, v{d}")


def phase_ln(a, tag):
    srd(a, 32, P_X, 2621440)
    srd(a, 36, P_WS, XNF_SZ, off=XNF)
    a(f"""
v_and_b32 v2, 7, v1
v_lshrrev_b32 v5, 3, v1
v_mul_u32_u24 v6, 1280, v2
v_lshl_add_u32 v3, v5, 4, v6
s_mul_i32 s40, s2, 10240
s_lshl_b32 s41, s{S_W}, 7
s_add_u32 s41, s41, s40
buffer_load_ushort v4, v6, s[32:35], s40 offen
buffer_load_dwordx4 v[8:11], v3, s[32:35], s41 offen
buffer_load_dwordx4 v[12:15], v3, s[32:35], s41 offen offset:512
s_cmp_ge_u32 s{S_W}, 2
s_cbranch_scc1 {tag}_l2
buffer_load_dwordx4 v[16:19], v3, s[32:35], s41 offen offset:1024
{tag}_l2:
v_lshlrev_b32 v5, 9, v5
v_lshl_add_u32 v3, v2, 4, v5
s_lshr_b32 s40, s2, 2
s_mul_i32 s40, s40, 40960
s_and_b32 s41, s2, 3
s_lshl_b32 s41, s41, 7
s_add_u32 s40, s40, s41
s_lshl_b32 s41, s{S_W}, 12
s_add_u32 s40, s40, s41
s_add_u32 s41, s40, 16384
s_add_u32 s42, s40, 32768
v_mov_b32 v44, 0
v_mov_b32 v45, 0
v_mov_b32 v46, 0
v_mov_b32 v47, 0
s_waitcnt vmcnt(0)
v_lshlrev_b32 v4, 16, v4
""")

    def acc(z):
        for i in range(4):
            r = 8 + 4 * z + i
            u = 20 + 8 * z + 2 * i
            a(f"""v_lshlrev_b32 v{u}, 16, v{r}
v_and_b32 v{u+1}, 0xffff0000, v{r}
v_pk_add_f32 v[48:49], v[{u}:{u+1}], v[4:5] op_sel_hi:[1,0] neg_lo:[0,1] neg_hi:[0,1]
v_pk_add_f32 v[44:45], v[44:45], v[48:49]
v_pk_fma_f32 v[46:47], v[48:49], v[48:49], v[46:47]""")

    acc(0)
    acc(1)
    a(f"s_cmp_ge_u32 s{S_W}, 2\ns_cbranch_scc1 {tag}_a2")
    acc(2)
    a(f"""
{tag}_a2:
v_add_f32 v44, v44, v45
v_add_f32 v46, v46, v47
v_lshrrev_b32 v5, 5, v1
v_lshl_add_u32 v5, v2, 1, v5
v_permlane32_swap_b32 v44, v46
v_mul_u32_u24 v5, 272, v5
v_add_f32 v44, v44, v46
v_mov_b32 v45, v44
s_lshl_b32 s43, s{S_W}, 2
v_add_u32 v5, s43, v5
v_permlane16_swap_b32 v44, v45
v_mul_u32_u24 v6, 544, v2
v_add_f32 v44, v44, v45
s_nop 1
v_add_f32_dpp v44, v44, v44 row_ror:8 row_mask:0xf bank_mask:0xf
ds_write_b32 v5, v44 offset:256
s_waitcnt lgkmcnt(0)
s_barrier
ds_read_b128 v[44:47], v6 offset:256
ds_read_b128 v[48:51], v6 offset:528
s_waitcnt lgkmcnt(1)
v_add_f32 v44, v44, v45
v_add_f32 v46, v46, v47
s_waitcnt lgkmcnt(0)
v_add_f32 v48, v48, v49
v_add_f32 v50, v50, v51
v_add_f32 v44, v44, v46
v_add_f32 v48, v48, v50
v_mul_f32 v44, {fbits(1/640)}, v44
v_mul_f32 v48, {fbits(1/640)}, v48
v_fma_f32 v48, -v44, v44, v48
v_add_f32 v44, v44, v4
v_max_f32 v48, 0, v48
""")
    bf16r(a, 44, 44)
    bf16r(a, 48, 48)
    a(f"v_add_f32 v48, {fbits(1e-5)}, v48")
    bf16r(a, 48, 48)
    a("v_sqrt_f32 v48, v48\ns_nop 0")
    bf16r(a, 48, 48)
    a("v_rcp_f32 v46, v48\ns_nop 0")

    def norm(z, soff):
        for i in range(4):
            r = 8 + 4 * z + i
            u = 20 + 8 * z + 2 * i
            a(f"""v_pk_add_f32 v[{u}:{u+1}], v[{u}:{u+1}], v[44:45] op_sel_hi:[1,0] neg_lo:[0,1] neg_hi:[0,1]
v_cvt_pk_bf16_f32 v{r}, v{u}, v{u+1}
v_lshlrev_b32 v{u}, 16, v{r}
v_and_b32 v{u+1}, 0xffff0000, v{r}
v_pk_mul_f32 v[{u}:{u+1}], v[{u}:{u+1}], v[46:47] op_sel_hi:[1,0]
v_cvt_pk_bf16_f32 v{r}, v{u}, v{u+1}""")
        a(f"buffer_store_dwordx4 v[{8+4*z}:{11+4*z}], v3, s[36:39], s{soff} offen")

    norm(0, 40)
    norm(1, 41)
    a(f"s_cmp_ge_u32 s{S_W}, 2\ns_cbranch_scc1 {tag}_n2")
    norm(2, 42)
    a(f"{tag}_n2:")


def phase_relayout(a, tag, s_unit, s_lds):
    srd(a, 32, P_WD, 2211840)
    srd(a, 36, P_WS, WDF_SZ, off=WDF)
    a(f"""
s_mul_i32 s40, s{s_unit}, 52429
s_lshr_b32 s40, s40, 18
s_mul_i32 s41, s40, 5
s_sub_u32 s41, s{s_unit}, s41
s_mul_i32 s42, s40, 40960
s_lshl_b32 s43, s41, 8
s_add_u32 s42, s42, s43
v_lshrrev_b32 v2, 4, v1
v_bfe_u32 v3, v1, 1, 3
v_and_b32 v4, 1, v1
v_xor_b32 v5, v3, v2
v_lshlrev_b32 v5, 5, v5
v_lshl_add_u32 v5, v4, 4, v5
v_mul_u32_u24 v6, 1280, v2
v_add_u32 v6, v6, v5
v_xor_b32 v7, 128, v5
v_mul_u32_u24 v8, 1280, v2
v_add_u32 v7, v7, v8
""")
    for z in range(8):
        a(f"""s_add_u32 m0, s{s_lds}, {z*1024}
s_add_u32 s43, s42, {z*5120}
buffer_load_dwordx4 v{7 if z & 1 else 6}, s[32:35], s43 offen lds""")
    a(f"""
v_lshrrev_b32 v2, 5, v1
v_bfe_u32 v3, v1, 2, 3
v_lshl_add_u32 v4, v2, 4, v3
v_lshlrev_b32 v4, 8, v4
v_and_b32 v5, 3, v1
v_lshl_add_u32 v4, v5, 3, v4
v_add_u32 v4, s{s_lds}, v4
v_lshlrev_b32 v3, 5, v3
v_lshlrev_b32 v9, 4, v1
s_lshl_b32 s43, s41, 3
s_waitcnt vmcnt(0)
""")
    for i in range(8):
        a(f"""v_xor_b32 v5, {i*32}, v3
v_add_u32 v5, v5, v4
ds_read_b64_tr_b16 v[{12+4*i}:{13+4*i}], v5
ds_read_b64_tr_b16 v[{14+4*i}:{15+4*i}], v5 offset:2048""")
    for i in range(8):
        a(f"""s_add_u32 s44, s43, {i}
s_mul_i32 s45, s44, 52429
s_lshr_b32 s45, s45, 18
s_mul_i32 s46, s45, 265
s_mul_i32 s47, s40, 5
s_add_u32 s46, s46, s47
s_add_u32 s46, s46, s44
s_lshl_b32 s46, s46, 10
s_waitcnt lgkmcnt({14-2*i})
buffer_store_dwordx4 v[{12+4*i}:{15+4*i}], v9, s[36:39], s46 offen""")


STG = 17408
M1 = [0, 0, 2, 4, 4, 4, 6, 8, 8]
A_KACC = 96


def row_of(rho, h):
    return 8 * (rho >> 2) + 4 * h + (rho & 3)


def kgen_loads(a, s_pair):
    srd(a, 32, P_LA, 163840)
    srd(a, 36, P_AI, 163840)
    srd(a, 40, P_CR, 163840)
    srd(a, 44, P_CI, 163840)
    a(f"""
s_lshl_b32 s48, s{s_pair}, 9
s_lshl_b32 s49, s{s_pair}, 2
v_lshlrev_b32 v2, 1, v0
buffer_load_ushort v8, v2, s[32:35], s48 offen
buffer_load_ushort v9, v2, s[36:39], s48 offen
buffer_load_ushort v10, v2, s[40:43], s48 offen
buffer_load_ushort v11, v2, s[44:47], s48 offen
s_load_dword s50, s[{P_DT}:{P_DT+1}], s49
s_load_dword s51, s[{P_DS}:{P_DS+1}], s49
""")


def cmul(a, d, x, y, t):
    a(f"""v_pk_mul_f32 v[{t}:{t+1}], v[{x}:{x+1}], v[{y}:{y+1}] op_sel_hi:[0,1]
v_pk_fma_f32 v[{d}:{d+1}], v[{x}:{x+1}], v[{y}:{y+1}], v[{t}:{t+1}] op_sel:[1,1,0] op_sel_hi:[1,0,1] neg_lo:[1,0,0]""")


def kgen_compute(a, tag, vm):
    E1, E8, E64, E256 = 12, 14, 16, 18
    T0, T1 = 20, 22
    Z = 24
    CV = 42
    a(f"""
s_waitcnt lgkmcnt(0)
s_cmp_ge_u32 s{S_W}, 2
s_cselect_b32 s48, 0, 16
s_lshl_b32 s50, s50, s48
s_and_b32 s50, s50, 0xffff0000
s_mul_i32 s48, s{S_W}, {STG}
s_mov_b32 m0, s48
v_mov_b32 v2, {fbits(LOG2E)}
v_mul_f32 v3, s50, v2
v_exp_f32 v3, v3
s_waitcnt vmcnt({vm})
v_lshlrev_b32 v8, 16, v8
v_mul_f32 v8, v8, v2
v_exp_f32 v8, v8
""")
    bf16r(a, 3, 3)
    bf16r(a, 8, 8)
    a(f"""
v_lshlrev_b32 v9, 16, v9
v_lshlrev_b32 v10, 16, v10
v_lshlrev_b32 v11, 16, v11
v_mul_f32 v8, v8, v3
v_mul_f32 v9, v9, v3
v_add_f32 v3, v3, v3
v_mul_f32 v8, {fbits(-LOG2E)}, v8
v_mul_f32 v9, 0.15915494, v9
v_mul_f32 v{Z}, v10, v3
v_mul_f32 v{Z+1}, v11, v3
""")
    for p, E in ((1, E1), (8, E8), (64, E64), (256, E256)):
        if p == 1:
            a(f"v_exp_f32 v{T0}, v8\nv_fract_f32 v{T0+1}, v9")
        else:
            a(f"""v_mul_f32 v{T0}, {fbits(float(p))}, v8
v_mul_f32 v{T0+1}, {fbits(float(p))}, v9
v_exp_f32 v{T0}, v{T0}
v_fract_f32 v{T0+1}, v{T0+1}""")
        a(f"""v_cos_f32 v{E}, v{T0+1}
v_sin_f32 v{E+1}, v{T0+1}
s_nop 0
v_pk_mul_f32 v[{E}:{E+1}], v[{E}:{E+1}], v[{T0}:{T0+1}] op_sel_hi:[1,0]""")
    cvn = [0]

    def putA(z, rows):
        c = CV + (cvn[0] & 3)
        cvn[0] += 1
        a(f"v_cvt_pk_bf16_f32 v{c}, v{z}, -v{z+1}")
        for r in rows:
            a(f"ds_write_addtid_b32 v{c} offset:{r*272}")

    def putB(z, b):
        c = CV + (cvn[0] & 3)
        cvn[0] += 1
        a(f"v_cvt_pk_bf16_f32 v{c}, v{z}, v{z+1}\nds_write_addtid_b32 v{c} offset:{(32+b)*272}")

    putA(Z, [row_of(0, 0)])
    for o in range(1, 9):
        cmul(a, Z + 2 * o, Z + 2 * (o - 1), E1, T0 if o & 1 else T1)
        putA(Z + 2 * o, [row_of(o, 0)])
    for k, o in enumerate((0, 2, 4, 6, 8)):
        cmul(a, Z + 2 * o, Z + 2 * o, E256, T0 if k & 1 else T1)
        putA(Z + 2 * o, [row_of(rho, 1) for rho in range(9) if M1[rho] == o])
    for h in (0, 1):
        for k, o in enumerate((0, 4, 8)):
            cmul(a, Z + 2 * o, Z + 2 * o, E256, T0 if k & 1 else T1)
            putA(Z + 2 * o, [row_of(9 + k, h)])
    for g in (0, 1):
        for h in (0, 1):
            for k, o in enumerate((0, 8)):
                cmul(a, Z + 2 * o, Z + 2 * o, E256, T0 if k & 1 else T1)
                putA(Z + 2 * o, [row_of(12 + 2 * g + k, h)])
    a(f"v_mov_b32 v{Z}, 1.0\nv_mov_b32 v{Z+1}, 0\nv_mov_b32 v{Z+2}, v{E8}\nv_mov_b32 v{Z+3}, v{E8+1}")
    putB(Z, 0)
    putB(Z + 2, 1)
    for b in range(2, 8):
        cmul(a, Z + 2 * b, Z + 2 * (b - 1), E8, T0 if b & 1 else T1)
        putB(Z + 2 * b, b)
    for b in range(8, 32):
        cmul(a, Z + 2 * (b & 7), Z + 2 * (b & 7), E64, T0 if b & 1 else T1)
        putB(Z + 2 * (b & 7), b)
    a(f"""
v_and_b32 v2, 31, v1
v_mul_u32_u24 v2, 272, v2
v_lshrrev_b32 v3, 5, v1
v_lshl_add_u32 v2, v3, 4, v2
s_lshr_b32 s48, s{S_W}, 1
s_mul_i32 s48, s48, {2*STG}
v_add_u32 v2, s48, v2
s_waitcnt lgkmcnt(0)
s_barrier
""")
    steps = [(hh, ks) for hh in (0, 1) for ks in range(8)]
    D = 6

    def rd(i):
        hh, ks = steps[i]
        b = 48 + 8 * (i % D)
        a(f"ds_read_b128 v[{b}:{b+3}], v2 offset:{hh*STG+ks*32}\nds_read_b128 v[{b+4}:{b+7}], v2 offset:{hh*STG+ks*32+32*272}")

    for i in range(D):
        rd(i)
    for i in range(16):
        b = 48 + 8 * (i % D)
        out = min(D - 1, 15 - i)
        a(f"s_waitcnt lgkmcnt({2*out})")
        c = "0" if i == 0 else ar(A_KACC, 16)
        a(f"v_mfma_f32_32x32x16_bf16 {ar(A_KACC,16)}, v[{b}:{b+3}], v[{b+4}:{b+7}], {c}")
        if i + D < 16:
            rd(i + D)
    a("s_barrier")


def wblk(kb8):
    return ((kb8 + 34) % 80) * 2048


def gemm1_setup(a, s_ft):
    srd(a, 52, P_WG, 2211840)
    srd(a, 56, P_WU, 2211840)
    a(f"""
v_lshrrev_b32 v2, 3, v1
v_bfe_u32 v3, v1, 1, 2
v_bfe_u32 v4, v1, 4, 1
v_xor_b32 v3, v3, v4
v_and_b32 v4, 1, v1
v_lshlrev_b32 v4, 4, v4
v_lshl_add_u32 v3, v3, 5, v4
v_mul_u32_u24 v2, 3456, v2
v_add_u32 v100, v2, v3
v_xor_b32 v3, 64, v3
v_add_u32 v101, v2, v3
s_lshl_b32 s60, s{s_ft}, 7
s_lshr_b32 s61, s{S_W}, 1
s_mul_i32 s62, s61, 27648
s_add_u32 s60, s60, s62
s_lshl_b32 s61, s{S_W}, 10
""")


def gemm1_dma(a, tag, ks_lo, ks_hi):
    a(f"s_bitcmp1_b32 s{S_W}, 0\ns_cbranch_scc1 {tag}_u")
    for mat in (0, 1):
        if mat:
            a(f"{tag}_u:")
        for ks in range(ks_lo, ks_hi):
            a(f"""s_add_u32 m0, s61, {wblk(2*ks)}
s_add_u32 s62, s60, {ks*55296}
buffer_load_dwordx4 v{100+mat}, s[{52+4*mat}:{55+4*mat}], s62 offen lds""")
        if not mat:
            a(f"s_branch {tag}_e")
    a(f"{tag}_e:")


XD = 8
ACC = 128


def gemm1_main(a, s_m, s_ft):
    a(f"""
s_lshl_b32 s40, s{s_m}, 2
s_add_u32 s40, s40, s{S_W}
s_mul_i32 s41, s40, 81920
""")
    srd(a, 32, P_WS, 81920, off=XNF, soff=41)
    a(f"""
v_lshlrev_b32 v102, 4, v1
v_add_u32 v103, 40960, v102
""")

    def xload(ks):
        b = 8 * (ks % XD)
        so = f"s{44 + (ks >> 2) % 2}"
        if ks % 4 == 0:
            a(f"s_mov_b32 {so}, {ks*1024}")
        a(f"buffer_load_dwordx4 {ar(b,4)}, v102, s[32:35], {so} offen offset:{(ks%4)*1024}")
        a(f"buffer_load_dwordx4 {ar(b+4,4)}, v103, s[32:35], {so} offen offset:{(ks%4)*1024}")

    for ks in range(XD):
        xload(ks)
    a(f"""
v_lshrrev_b32 v2, 4, v1
v_lshlrev_b32 v2, 10, v2
v_bfe_u32 v3, v1, 2, 2
v_lshl_add_u32 v2, v3, 7, v2
v_and_b32 v3, 3, v1
v_lshl_add_u32 v2, v3, 3, v2
v_bfe_u32 v3, v1, 3, 2
v_lshlrev_b32 v3, 5, v3
""")
    cur = [None]

    def setbase(win):
        if cur[0] is None:
            for ft in range(4):
                a(f"v_xor_b32 v4, {ft*32}, v3\nv_add3_u32 v{104+ft}, v2, v4, s46")
        cur[0] = win

    def win_of(ks):
        return wblk(2 * ks) >> 16

    a(f"s_mov_b32 s46, {win_of(0) << 16}")
    setbase(win_of(0))
    a(f"""
s_mul_i32 s41, s40, 221184
s_lshl_b32 s42, s{s_ft}, 13
s_add_u32 s41, s41, s42
""")
    srd(a, 36, P_WS, 8192, off=HF, soff=41)
    a(f"""
v_bfe_u32 v2, v1, 4, 1
v_lshlrev_b32 v2, 10, v2
v_and_b32 v3, 15, v1
v_lshl_add_u32 v2, v3, 4, v2
v_lshrrev_b32 v3, 5, v1
v_lshl_add_u32 v108, v3, 8, v2
v_add_u32 v109, 4096, v108
s_waitcnt vmcnt({2*XD-2})
s_barrier
""")
    stamp(a,3)
    basewin = [win_of(0)] * 4

    def wread(ks, ft):
        w = win_of(ks)
        if w != basewin[ft]:
            d = (w - basewin[ft]) << 16
            a(f"v_add_u32 v{104+ft}, {d & 0xffffffff:#x}, v{104+ft}")
            basewin[ft] = w
        o = wblk(2 * ks) & 0xFFFF
        b = 64 + 16 * (ks & 1) + 4 * ft
        a(f"ds_read_b64_tr_b16 {ar(b,2)}, v{104+ft} offset:{o}\nds_read_b64_tr_b16 {ar(b+2,2)}, v{104+ft} offset:{o+512}")

    for ft in range(4):
        wread(0, ft)
    for ks in range(40):
        xs = 8 * (ks % XD)
        if ks > 0:
            a(f"s_waitcnt vmcnt({2*min(XD-1, 39-ks)})")
        for ft in range(4):
            wb = 64 + 16 * (ks & 1) + 4 * ft
            a(f"s_waitcnt lgkmcnt({6 if ks < 39 else 6-2*ft})")
            for tt in range(2):
                d = ACC + 32 * ft + 16 * tt
                c = "0" if ks == 0 else vr(d, 16)
                a(f"v_mfma_f32_32x32x16_bf16 {vr(d,16)}, {ar(wb,4)}, {ar(xs+4*tt,4)}, {c}")
                if tt == 0 and ks < 39:
                    wread(ks + 1, ft)
        if ks + XD < 40:
            xload(ks + XD)


def gemm1_epilogue(a):
    a(f"s_mov_b32 s44, {fbits(-LOG2E)}\ns_mov_b32 s45, s44\ns_nop 4")
    n = 0
    for ft in range(4):
        for tt in range(2):
            d = ACC + 32 * ft + 16 * tt
            if ft == 3:
                a("s_nop 7")
            for i in range(0, 8, 2):
                a(f"v_pk_mul_f32 v[{d+i}:{d+i+1}], v[{d+i}:{d+i+1}], s[44:45]")
            for i in range(8):
                a(f"v_exp_f32 v{d+i}, v{d+i}")
            for i in range(0, 8, 2):
                a(f"v_pk_add_f32 v[{d+i}:{d+i+1}], v[{d+i}:{d+i+1}], 1.0 op_sel_hi:[1,0]")
            for i in range(8):
                a(f"v_rcp_f32 v{d+i}, v{d+i}")
            for i in range(0, 8, 2):
                a(f"v_pk_mul_f32 v[{d+i}:{d+i+1}], v[{d+i}:{d+i+1}], v[{d+8+i}:{d+9+i}]")
            for i in range(4):
                a(f"v_cvt_pk_bf16_f32 v{d+8+i}, v{d+2*i}, v{d+2*i+1}")
            a(f"buffer_store_dwordx4 v[{d+8}:{d+11}], v{108+(ft>>1)}, s[36:39], 0 offen offset:{tt*2048+(ft&1)*512}")
            n += 1


CB = 13312
R1O, UO = 4160, 8320
SCR = 2 * CB


def conv_uload(a, s_pair):
    srd(a, 40, P_WS, XNF_SZ, off=XNF)
    a(f"""
s_lshr_b32 s46, s{s_pair}, 2
s_lshl_b32 s46, s46, 9
s_and_b32 s47, s{s_pair}, 3
s_lshl_b32 s47, s47, 2
s_add_u32 s46, s46, s47
s_mul_i32 s47, s{S_W}, 655360
s_add_u32 s46, s46, s47
v_lshrrev_b32 v2, 5, v1
v_mul_u32_u24 v2, 40960, v2
v_and_b32 v3, 31, v1
v_lshl_add_u32 v110, v3, 4, v2
""")
    for z in range(8):
        a(f"buffer_load_dword v{112+z}, v110, s[40:43], s46 offen")
        if z < 7:
            a("s_add_u32 s46, s46, 81920")


def conv_main(a, tag, s_pair, vm):
    P = 8
    for i in range(16):
        a(f"v_accvgpr_read_b32 v{P+i}, a{A_KACC+i}")
    a(f"""
s_lshr_b32 s44, s{S_W}, 1
s_mul_i32 s44, s44, {CB}
s_and_b32 s45, s{S_W}, 1
s_mul_i32 s46, s45, {R1O}
s_add_u32 s46, s46, s44
v_lshlrev_b32 v2, 4, v1
v_sub_u32 v2, {4080-3072}, v2
v_add_u32 v2, s46, v2
v_and_b32 v3, 1, v1
v_cmp_eq_u32 vcc, 0, v3
v_mov_b32 v40, 0
v_mov_b32 v41, 0
v_mov_b32 v42, 0
v_mov_b32 v43, 0
v_cndmask_b32 v24, v{P+13}, v{P+12}, vcc
v_cndmask_b32 v25, v{P+15}, v{P+14}, vcc
v_lshlrev_b32 v3, 4, v1
v_add_u32 v4, s44, v3
v_add_u32 v3, s46, v3
s_mov_b64 exec, 0x3fffffff
ds_write_b128 v4, v[40:43] offset:{UO}
s_mov_b64 exec, -1
s_cmp_eq_u32 s45, 1
s_cbranch_scc1 {tag}_c1
""")
    S0 = [P + o for o in range(9)]
    S2 = [P + 9] * 3 + [P + 10] * 3 + [P + 11] * 3
    S3a = [P + 12] * 4 + [24] + [P + 13] * 4
    S3b = [P + 14] * 4 + [25] + [P + 15] * 4
    for cp in (0, 1):
        if cp:
            a(f"{tag}_c1:")
        for k, (S, off) in enumerate(((S0, 3072), (S2, 2048), (S3a, 1024), (S3b, 0))):
            b = 28 + 4 * (k & 1)
            for i in range(4):
                a(f"v_cvt_pk_bf16_f32 v{b+i}, v{S[7+cp-2*i]}, v{S[6+cp-2*i]}")
            a(f"ds_write_b128 v2, v[{b}:{b+3}] offset:{off}")
        if cp:
            a(f"s_mov_b64 exec, 1\nv_cvt_pk_bf16_f32 v40, v{P}, v41")
        else:
            a(f"s_branch {tag}_c2")
    a(f"""
{tag}_c2:
s_mov_b64 exec, 3
ds_write_b128 v3, v[40:43] offset:4096
s_mov_b64 exec, -1
s_lshl_b32 s46, s{S_W}, 10
v_lshl_add_u32 v2, v1, 1, s46
s_waitcnt vmcnt({vm})
""")
    for z in range(8):
        a(f"ds_write_b16 v2, v{112+z} offset:{UO+480+128*z}\nds_write_b16_d16_hi v2, v{112+z} offset:{CB+UO+480+128*z}")
    a(f"""
v_and_b32 v2, 15, v1
v_lshrrev_b32 v3, 4, v1
v_and_b32 v4, 1, v1
v_cmp_eq_u32 vcc, 0, v4
v_mov_b32 v5, {2*(2031-96-256*7)}
v_mov_b32 v6, {R1O+2*(2032-96-256*7)}
v_lshlrev_b32 v4, 4, v3
v_cndmask_b32 v5, v5, v6, vcc
v_add_u32 v5, v5, v4
v_lshlrev_b32 v6, 1, v2
v_sub_u32 v5, v5, v6
s_lshl_b32 s46, s45, 8
s_sub_u32 s46, s44, s46
v_add_u32 v47, s46, v5
v_add_u32 v46, 1024, v47
v_add_u32 v45, 2048, v47
v_add_u32 v44, 3072, v47
v_lshl_add_u32 v4, v2, 5, v4
s_add_u32 s46, s46, {UO+256}
v_add_u32 v48, s46, v4
""")
    a(f"""
v_mul_u32_u24 v3, 320, v3
v_lshl_add_u32 v3, v2, 4, v3
s_mul_i32 s46, s{S_W}, 10240
s_add_u32 s46, s46, {SCR}
v_add_u32 v49, s46, v3
v_and_b32 v3, 3, v1
v_mul_u32_u24 v3, 320, v3
v_lshrrev_b32 v2, 2, v1
v_lshl_add_u32 v3, v2, 4, v3
s_mul_i32 s46, s{S_W}, 2560
s_add_u32 s46, s46, {SCR}
v_add_u32 v50, s46, v3
s_lshl_b32 s46, s{S_W}, 10
v_lshl_add_u32 v51, v1, 3, s46
s_waitcnt lgkmcnt(0)
s_barrier
""")
    stamp(a,6)
    FA, FB = 128, 160
    Y = 64

    def reads(c):
        s = 64 * (c & 1)
        out = []
        for k in range(8):
            o = 16 * (3 - c) + (128 if k % 2 == 0 else 0)
            b = FA + s + 4 * k
            out.append(f"ds_read2_b32 {ar(b,2)}, v{44+(k>>1)} offset0:{o} offset1:{o+1}")
            out.append(f"ds_read2_b32 {ar(b+2,2)}, v{44+(k>>1)} offset0:{o+2} offset1:{o+3}")
            out.append(f"ds_read_b128 {ar(FB+s+4*k,4)}, v48 offset:{512*k+64*(3-c)}")
        return out

    for x in reads(0):
        a(x)
    for c in range(4):
        s = 64 * (c & 1)
        nxt = reads(c + 1) if c < 3 else []
        a("s_waitcnt lgkmcnt(0)")
        for aa in range(8):
            for m in range(8 - aa):
                j = aa + m
                cc = "0" if (c == 0 and aa == 0) else vr(Y + 4 * j, 4)
                a(f"v_mfma_f32_16x16x32_bf16 {vr(Y+4*j,4)}, {ar(FA+s+4*aa,4)}, {ar(FB+s+4*m,4)}, {cc}")
                if nxt:
                    a(nxt.pop(0))
    stamp(a,7)
    a(f"""
s_lshl_b32 s46, s{s_pair}, 13
""")
    srd(a, 40, P_WS, 8192, off=SP, soff=46)
    a("s_lshl_b32 s46, s51, 16\ns_and_b32 s47, s51, 0xffff0000")
    for j in range(8):
        if j == 7:
            a("s_nop 1")
        a(f"ds_write_b128 v49, {vr(Y+4*j,4)} offset:{1280*j}")
    a(f"""
v_lshlrev_b32 v52, 4, v1
s_lshl_b32 s48, s{S_W}, 11
s_waitcnt lgkmcnt(0)
s_barrier
""")
    for jj in range(2):
        for w in range(4):
            a(f"ds_read_b128 {vr(Y+16*jj+4*w,4)}, v50 offset:{10240*w+1280*jj}")
        for ch in range(2):
            a(f"ds_read_b64 {vr(8+4*jj+2*ch,2)}, v51 offset:{CB*ch+UO+480+512*jj}")
    for jj in range(2):
        a(f"s_waitcnt lgkmcnt({6-6*jj})")
        for ch in range(2):
            y = Y + 16 * jj + 8 * ch
            u = 8 + 4 * jj + 2 * ch
            a(f"""v_pk_add_f32 v[{y}:{y+1}], v[{y}:{y+1}], v[{y+4}:{y+5}]
v_pk_add_f32 v[{y+2}:{y+3}], v[{y+2}:{y+3}], v[{y+6}:{y+7}]
v_lshlrev_b32 v{y+4}, 16, v{u}
v_and_b32 v{y+5}, 0xffff0000, v{u}
v_lshlrev_b32 v{y+6}, 16, v{u+1}
v_and_b32 v{y+7}, 0xffff0000, v{u+1}""")
            for e in range(4):
                a(f"v_fmac_f32 v{y+e}, s{46+ch}, v{y+4+e}")
        y = Y + 16 * jj
        for e in range(4):
            a(f"v_cvt_pk_bf16_f32 v{y+4+e}, v{y+e}, v{y+8+e}")
        a(f"buffer_store_dwordx4 v[{y+4}:{y+7}], v52, s[40:43], s48 offen offset:{1024*jj}")


G2D = 4
RS = 336
PART = 64 * RS
SLDS = 4 * PART


def phase_gemm2(a, tag):
    a(f"""
s_and_b32 s40, s2, 7
s_lshr_b32 s41, s2, 6
s_lshl_b32 s40, s40, 2
s_add_u32 s40, s40, s41
s_bfe_u32 s41, s2, 0x30003
s_mul_i32 s42, s40, 221184
s_mul_i32 s43, s41, 276480
""")
    srd(a, 32, P_WS, 221184, off=HF, soff=42)
    srd(a, 36, P_WS, 276480, off=WDF, soff=43)
    a(f"""
v_lshlrev_b32 v2, 4, v1
v_add_u32 v3, 4096, v2
s_lshl_b32 s44, s{S_W}, 12
s_mul_i32 s45, s{S_W}, 5120
""")

    def load(i):
        b = 36 * (i % G2D)
        for mt in range(4):
            a(f"buffer_load_dwordx4 {ar(b+4*mt,4)}, v2, s[32:35], s44 offen offset:{1024*mt}")
        for nt in range(4):
            a(f"buffer_load_dwordx4 {ar(b+16+4*nt,4)}, v2, s[36:39], s45 offen offset:{1024*nt}")
        a(f"buffer_load_dwordx4 {ar(b+32,4)}, v3, s[36:39], s45 offen")
        a("s_add_u32 s44, s44, 16384\ns_add_u32 s45, s45, 20480")

    for i in range(G2D):
        load(i)
    a(f"""
s_mul_i32 s46, s41, 327680
s_lshl_b32 s47, s40, 8
s_add_u32 s46, s46, s47
""")
    srd(a, 48, P_WS, 39 * 8192 + 256, off=SP, soff=46)
    a(f"""
s_mul_i32 s46, s40, 81920
s_mul_i32 s47, s41, 160
s_add_u32 s46, s46, s47
s_mul_i32 s47, s{S_W}, 20480
s_add_u32 s46, s46, s47
""")
    srd(a, 52, P_X, 15 * 1280 + 160, soff=46)
    srd(a, 56, P_OUT, 15 * 1280 + 160, soff=46)
    a(f"""
v_lshrrev_b32 v4, 4, v0
v_and_b32 v5, 15, v0
v_lshlrev_b32 v5, 4, v5
v_lshl_add_u32 v6, v4, 13, v5
v_mul_u32_u24 v4, 272, v4
v_add_u32 v7, v4, v5
v_add_u32 v7, {SLDS}, v7
s_mov_b32 s46, 131072
s_mov_b32 s47, 262144
""")
    for z in range(5):
        a(f"""v_add_u32 v4, {64*z}, v1
v_mul_u32_u24 v5, 3277, v4
v_lshrrev_b32 v5, 16, v5
v_mul_u32_u24 v45, 20, v5
v_sub_u32 v4, v4, v45
v_mul_u32_u24 v45, 1280, v5
v_lshl_add_u32 v{30+z}, v4, 3, v45
v_lshl_add_u32 v5, s{S_W}, 4, v5
v_mul_u32_u24 v45, {RS}, v5
v_lshl_add_u32 v{35+z}, v4, 4, v45
v_mul_u32_u24 v45, 544, v4
v_lshl_add_u32 v45, v5, 2, v45
v_add_u32 v{40+z}, {SLDS}, v45""")
    a(f"""
v_and_b32 v4, 15, v1
v_mul_u32_u24 v4, {RS}, v4
v_lshrrev_b32 v5, 4, v1
v_lshl_add_u32 v4, v5, 4, v4
s_mul_i32 s60, s{S_W}, {PART}
v_add_u32 v46, s60, v4
""")
    Y = 48
    NS = 14
    extra_at = NS - G2D
    for i in range(NS):
        b = 36 * (i % G2D)
        out = 9 * min(G2D - 1, NS - 1 - i) + (8 if i > extra_at else 0)
        a(f"s_waitcnt vmcnt({out})")
        if i == 0: stamp(a,2)
        for mt in range(4):
            for nt in range(5):
                d = Y + 20 * mt + 4 * nt
                cc = "0" if i == 0 else vr(d, 4)
                a(f"v_mfma_f32_16x16x32_bf16 {vr(d,4)}, {ar(b+16+4*nt,4)}, {ar(b+4*mt,4)}, {cc}")
        if i + G2D < NS:
            load(i + G2D)
        if i == extra_at:
            a("""buffer_load_dwordx4 v[8:11], v6, s[48:51], 0 offen
buffer_load_dwordx4 v[12:15], v6, s[48:51], s46 offen
buffer_load_dwordx4 v[16:19], v6, s[48:51], s47 offen""")
            for z in range(5):
                a(f"buffer_load_dwordx2 v[{20+2*z}:{21+2*z}], v{30+z}, s[52:55], 0 offen")
    a("s_nop 3")
    stamp(a,3)
    for mt in range(4):
        for nt in range(5):
            d = Y + 20 * mt + 4 * nt
            a(f"ds_write_b128 v46, {vr(d,4)} offset:{mt*16*RS+nt*64}")
    a(f"""
s_waitcnt vmcnt(5)
ds_write_b128 v7, v[8:11]
ds_write_b128 v7, v[12:15] offset:{16*272}
s_cmp_ge_u32 s{S_W}, 2
s_cbranch_scc1 {tag}_s2
ds_write_b128 v7, v[16:19] offset:{32*272}
{tag}_s2:
s_mov_b32 s44, {fbits(-LOG2E)}
s_mov_b32 s45, s44
s_waitcnt lgkmcnt(0)
s_barrier
""")

    stamp(a,4)
    def rd(z):
        for w in range(4):
            a(f"ds_read_b128 {vr(Y+16*z+4*w,4)}, v{35+z} offset:{w*PART}")
        a(f"ds_read2_b32 v[{8+2*z}:{9+2*z}], v{40+z} offset0:0 offset1:68")

    rd(0)
    rd(1)
    rd(2)
    a("s_waitcnt vmcnt(0)")
    for z in range(5):
        y = Y + 16 * z
        a(f"s_waitcnt lgkmcnt({5*min(2,4-z)})")
        a(f"""v_pk_add_f32 v[{y}:{y+1}], v[{y}:{y+1}], v[{y+4}:{y+5}]
v_pk_add_f32 v[{y+2}:{y+3}], v[{y+2}:{y+3}], v[{y+6}:{y+7}]
v_pk_add_f32 v[{y+8}:{y+9}], v[{y+8}:{y+9}], v[{y+12}:{y+13}]
v_pk_add_f32 v[{y+10}:{y+11}], v[{y+10}:{y+11}], v[{y+14}:{y+15}]
v_pk_add_f32 v[{y}:{y+1}], v[{y}:{y+1}], v[{y+8}:{y+9}]
v_pk_add_f32 v[{y+2}:{y+3}], v[{y+2}:{y+3}], v[{y+10}:{y+11}]""")
        if z + 3 < 5:
            rd(z + 3)
        a(f"""v_pk_mul_f32 v[{y+4}:{y+5}], v[{y}:{y+1}], s[44:45]
v_pk_mul_f32 v[{y+6}:{y+7}], v[{y+2}:{y+3}], s[44:45]""")
        for e in range(4):
            a(f"v_exp_f32 v{y+4+e}, v{y+4+e}")
        s0, x0 = 8 + 2 * z, 20 + 2 * z
        a(f"""v_lshlrev_b32 v{y+8}, 16, v{s0}
v_and_b32 v{y+9}, 0xffff0000, v{s0}
v_pk_add_f32 v[{y+4}:{y+5}], v[{y+4}:{y+5}], 1.0 op_sel_hi:[1,0]
v_pk_add_f32 v[{y+6}:{y+7}], v[{y+6}:{y+7}], 1.0 op_sel_hi:[1,0]""")
        for e in range(4):
            a(f"v_rcp_f32 v{y+4+e}, v{y+4+e}")
        a(f"""v_lshlrev_b32 v{y+10}, 16, v{s0+1}
v_and_b32 v{y+11}, 0xffff0000, v{s0+1}
v_lshlrev_b32 v{y+12}, 16, v{x0}
v_and_b32 v{y+13}, 0xffff0000, v{x0}
v_lshlrev_b32 v{y+14}, 16, v{x0+1}
v_and_b32 v{y+15}, 0xffff0000, v{x0+1}
v_pk_mul_f32 v[{y}:{y+1}], v[{y}:{y+1}], v[{y+4}:{y+5}]
v_pk_mul_f32 v[{y+2}:{y+3}], v[{y+2}:{y+3}], v[{y+6}:{y+7}]
v_pk_fma_f32 v[{y}:{y+1}], v[{y}:{y+1}], v[{y+8}:{y+9}], v[{y+12}:{y+13}]
v_pk_fma_f32 v[{y+2}:{y+3}], v[{y+2}:{y+3}], v[{y+10}:{y+11}], v[{y+14}:{y+15}]
v_cvt_pk_bf16_f32 v{y+4}, v{y}, v{y+1}
v_cvt_pk_bf16_f32 v{y+5}, v{y+2}, v{y+3}
buffer_store_dwordx2 v[{y+4}:{y+5}], v{30+z}, s[56:59], 0 offen""")


def descriptor(name, vg, acc):
    return f""".amdhsa_kernel {name}
  .amdhsa_next_free_vgpr {vg}
  .amdhsa_next_free_sgpr 102
  .amdhsa_accum_offset {acc}
  .amdhsa_group_segment_fixed_size 0
  .amdhsa_kernarg_size 112
  .amdhsa_user_sgpr_count 2
  .amdhsa_user_sgpr_kernarg_segment_ptr 1
  .amdhsa_system_sgpr_workgroup_id_x 1
.end_amdhsa_kernel
"""


def build():
    a = A()
    a('.amdgcn_target "amdgcn-amd-amdhsa--gfx950"\n.text')
    prologue(a, "prep_kernel")
    stamp(a,1)
    phase_ln(a, "ln")
    stamp(a,2)
    a(f"""
s_mov_b32 s64, s2
s_mov_b32 s65, 8192
s_cmp_eq_u32 s{S_W}, 3
s_cbranch_scc1 prep_rl
s_add_u32 s64, s2, 256
s_mov_b32 s65, 16384
s_cmp_lg_u32 s{S_W}, 2
s_cbranch_scc1 prep_fin
s_cmp_ge_u32 s64, 270
s_cbranch_scc1 prep_fin
prep_rl:
""")
    phase_relayout(a, "rl", 64, 65)
    a("prep_fin:")
    stamp_out(a,0,3)
    a("prep_kernel_end:\ns_endpgm")
    prologue(a, "mid_kernel")
    a(f"""
s_and_b32 s64, s2, 7
s_lshr_b32 s65, s2, 3
s_and_b32 s66, s64, 1
s_lshl_b32 s66, s66, 2
s_and_b32 s67, s65, 3
s_add_u32 s66, s66, s67
s_lshr_b32 s67, s64, 1
s_mul_i32 s67, s67, 7
s_lshr_b32 s70, s65, 2
s_add_u32 s67, s67, s70
s_mov_b32 s69, s65
s_mov_b32 s71, 1
s_cmp_ge_u32 s70, 7
s_cselect_b32 s71, 0, s71
s_cmp_ge_u32 s67, 27
s_cselect_b32 s71, 0, s71
mid_loop:
s_lshr_b32 s68, s69, 2
s_lshl_b32 s68, s68, 3
s_add_u32 s68, s68, s64
s_lshl_b32 s68, s68, 2
s_and_b32 s70, s69, 3
s_add_u32 s68, s68, s70
""")
    kgen_loads(a, 68)
    a("s_cmp_eq_u32 s71, 0\ns_cbranch_scc1 mid_spare")
    gemm1_setup(a, 67)
    gemm1_dma(a, "dA", 0, 23)
    a("s_waitcnt vmcnt(23)\ns_branch mid_kg\nmid_spare:\ns_waitcnt vmcnt(0)\nmid_kg:")
    stamp(a,1)
    kgen_compute(a, "kg", 63)
    stamp(a,2)
    a("s_cmp_eq_u32 s71, 0\ns_cbranch_scc1 mid_spare2")
    gemm1_dma(a, "dB", 23, 40)
    gemm1_main(a, 66, 67)
    stamp(a,4)
    conv_uload(a, 68)
    a("s_barrier")
    gemm1_epilogue(a)
    a("s_waitcnt vmcnt(8)\ns_branch mid_cv\nmid_spare2:")
    conv_uload(a, 68)
    a("s_nop 7\ns_waitcnt vmcnt(0)\nmid_cv:")
    stamp(a,5)
    conv_main(a, "cv", 68, 63)
    a("""
s_cmp_lt_u32 s65, 28
s_cbranch_scc1 mid_fin
s_add_u32 s69, s69, 4
s_cmp_ge_u32 s69, 40
s_cbranch_scc1 mid_fin
s_barrier
s_branch mid_loop
mid_fin:""")
    stamp_out(a,1,8)
    a("""
mid_kernel_end:
s_endpgm
""")
    prologue(a, "fin_kernel")
    stamp(a,1)
    phase_gemm2(a, "g2")
    stamp_out(a,2,5)
    a("fin_kernel_end:\ns_endpgm")
    body = a.text()
    head = f"""; S4D long-convolution + GLU block, generated by gen1.py
; @launch kernel=prep_kernel grid=(256,1,1) block=(256,1,1) lds=24576
; @launch kernel=mid_kernel grid=(256,1,1) block=(256,1,1) lds=163840
; @launch kernel=fin_kernel grid=(256,1,1) block=(256,1,1) lds={SLDS+40*272}
"""
    tail = '.section .rodata,"a"\n.p2align 6\n' + descriptor("prep_kernel", 64, 64) + ".p2align 6\n" + descriptor("mid_kernel", 512, 256) + ".p2align 6\n" + descriptor("fin_kernel", 128 + 144, 128)
    return head + body + tail


if __name__ == "__main__":
    if len(sys.argv) > 2: STAMPS = True
    t = build()
    out = sys.argv[1] if len(sys.argv) > 1 else f"cdna_kernels/{NAME}.s"
    open(out, "w").write(t)
    e = check(t)
    for x in e:
        print("HAZARD need %d have %d: L%d [%s] -> L%d [%s]" % (x[2], x[3], x[0], x[4], x[1], x[5]))
    print(len(e), "hazards;", len(t), "bytes")
```

```python
import sys
def mk(src, out, s1, a1, s2, a2, mult, lo=0, hi=192):
    s = open(src).read()
    n = (hi-lo)*4//64
    def agg(slot, a, dst):
        t = ""
        if a in ("min","max"):
            t += f"    v_mov_b32 v2, {'-1' if a=='min' else '0'}\n"
            for k in range(n):
                t += f"    s_mov_b32 s20, {(lo*4+64*k)*64+4*slot}\n    buffer_load_dword v3, v1, s[8:11], s20 offen\n    s_waitcnt vmcnt(0)\n    v_{a}_u32 v2, v2, v3\n"
            t += f"    s_mov_b32 s{dst}, {'-1' if a=='min' else '0'}\n"
            for l in range(64):
                t += f"    v_readlane_b32 s21, v2, {l}\n    s_nop 1\n    s_{a}_u32 s{dst}, s{dst}, s21\n"
        elif a.startswith("cnt"):
            b = int(a[3:])-1
            t += f"    s_mov_b32 s{dst}, 0\n"
            for k in range(n):
                t += f"    s_mov_b32 s20, {(lo*4+64*k)*64+4*(12+b//4)}\n    buffer_load_dword v3, v1, s[8:11], s20 offen\n    s_waitcnt vmcnt(0)\n    v_bfe_u32 v3, v3, {8*(b%4)}, 8\n    v_cmp_ne_u32 vcc, 0, v3\n    s_nop 4\n    s_bcnt1_i32_b64 s21, vcc\n    s_add_u32 s{dst}, s{dst}, s21\n"
        else:
            t += f"    s_mov_b32 s{dst}, 0\n"
        return t
    code = f""".p2align 8
.globl probe_kernel
.type probe_kernel,@function
probe_kernel:
    s_cmp_ge_u32 s2, 1
    s_cbranch_scc1 probe_end
    s_memrealtime s[12:13]
    s_load_dwordx2 s[4:5], s[0:1], 104
    s_waitcnt lgkmcnt(0)
    s_add_u32 s8, s4, 0x1100000
    s_addc_u32 s9, s5, 0
    s_mov_b32 s10, 65536
    s_mov_b32 s11, 0x20000
    v_lshlrev_b32 v1, 6, v0
{agg(s1,a1,16)}{agg(s2,a2,17)}
    s_sub_u32 s18, s17, s16
    s_mul_i32 s18, s18, {mult}
    s_min_u32 s18, s18, 100000
    s_add_u32 s18, s18, 6000
probe_l:
    s_memrealtime s[14:15]
    s_waitcnt lgkmcnt(0)
    s_sub_u32 s14, s14, s12
    s_cmp_lt_u32 s14, s18
    s_cbranch_scc1 probe_l
probe_end:
    s_endpgm
"""
    desc = """.p2align 6
.amdhsa_kernel probe_kernel
  .amdhsa_next_free_vgpr 8
  .amdhsa_next_free_sgpr 32
  .amdhsa_accum_offset 8
  .amdhsa_group_segment_fixed_size 0
  .amdhsa_kernarg_size 112
  .amdhsa_user_sgpr_count 2
  .amdhsa_user_sgpr_kernarg_segment_ptr 1
  .amdhsa_system_sgpr_workgroup_id_x 1
.end_amdhsa_kernel
"""
    s = s.replace("; @launch grid", "; @launch kernel=recurrent_scan__ssm_conv_s4d__glu_gated_glu__prompt_kernel grid")
    lines = s.split("\n")
    last = max(i for i,l in enumerate(lines) if "@launch" in l)
    lines.insert(last+1, "; @launch kernel=probe_kernel grid=(1,1,1) block=(64,1,1) lds=0")
    open(out,"w").write("\n".join(lines).replace('.section .rodata,"a"', code + '.section .rodata,"a"') + desc)
if __name__=="__main__":
    for i,spec in enumerate(sys.argv[2:]):
        f=spec.split(",")
        mk(sys.argv[1], f"pr{i}.s", int(f[0]), f[1], int(f[2]), f[3], int(f[4]), *[int(x) for x in f[5:]])
```
